```python
import torch

def _softmax(x, axis=-1):
    return torch.softmax(x, dim=axis)
def _gelu(x):
    return torch.nn.functional.gelu(x, approximate="tanh")
def _silu(x):
    return torch.nn.functional.silu(x)
def _sigmoid(x):
    return torch.sigmoid(x)
def _layernorm(x, axis=-1, eps=1e-5):
    m = x.mean(dim=axis, keepdim=True)
    v = x.var(dim=axis, keepdim=True, unbiased=False)
    return (x - m) / torch.sqrt(v + eps)
def _scatter_add(tgt, idx, src, axis=0):
    return tgt.clone().index_add_(axis, idx, src)
def _segment_sum(src, seg, n):
    out = torch.zeros((n,) + src.shape[1:], dtype=src.dtype)
    return out.index_add_(0, seg, src)
def _pad(x, pw):
    flat = tuple(v for pair in reversed(pw) for v in pair)
    return torch.nn.functional.pad(x, flat)

kernel_name = 'parallel_sum__sliding_local_dilated__mixer_s_mlp__prompt'

def setup_inputs():

    _w = (lambda a: (lambda t: t.to(torch.bfloat16) if t.is_floating_point() else t)(torch.as_tensor(a)))
    def _A_setup():
        B, S, D = 1, 2048, 512
        return {
            "x": _w((lambda *s: torch.randn(*s, dtype=torch.bfloat16) * 0.05)(B, S, D)),
            "wqkv": _w((lambda *s: torch.randn(*s, dtype=torch.bfloat16) * 0.05)(D, 3 * D)),
            "wo": _w((lambda *s: torch.randn(*s, dtype=torch.bfloat16) * 0.05)(D, D)),
        }
    _A_in = _A_setup()

    def _B_setup():
        B, S, D, F = 1, 2048, 512, 1376
        return {
            "x":  _w((lambda *s: torch.randn(*s, dtype=torch.bfloat16) * 0.05)(B, S, D)),
            "w1": _w((lambda *s: torch.randn(*s, dtype=torch.bfloat16) * 0.8)(D, D) * (D ** -0.5)),
            "w2": _w((lambda *s: torch.randn(*s, dtype=torch.bfloat16) * 0.8)(D, D) * (D ** -0.5)),
            "w3": _w((lambda *s: torch.randn(*s, dtype=torch.bfloat16) * 0.8)(D, F) * (D ** -0.5)),
            "w4": _w((lambda *s: torch.randn(*s, dtype=torch.bfloat16) * 0.8)(F, D) * (F ** -0.5)),
        }
    _B_in = _B_setup()

    return {
        "A_x": _A_in["x"],
        "A_wqkv": _A_in["wqkv"],
        "A_wo": _A_in["wo"],
        "B_x": _B_in["x"],
        "B_w1": _B_in["w1"],
        "B_w2": _B_in["w2"],
        "B_w3": _B_in["w3"],
        "B_w4": _B_in["w4"],
    }

def reference(A_x, A_wqkv, A_wo, B_x, B_w1, B_w2, B_w3, B_w4):
    def _A_ref(x, wqkv, wo):
        B, S, D = x.shape
        H = 32; Dh = D // H
        W, dil = 8, 2
        qkv = (lambda x, *d: x.permute(*d))((x @ wqkv).reshape(B, S, 3, H, Dh), 2, 0, 3, 1, 4)
        q, k, v = qkv[0], qkv[1], qkv[2]
        scale = Dh ** -0.5
        pos = torch.arange(S)
        off = torch.arange(W) * dil
        idx = pos[:, None] - off[None, :]
        mask = idx >= 0
        idx_c = torch.where(mask, idx, 0).reshape(-1)
        kg = k[:, :, idx_c, :].reshape(B, H, S, W, Dh)
        vg = v[:, :, idx_c, :].reshape(B, H, S, W, Dh)
        logits = torch.einsum("bhsd,bhswd->bhsw", q, kg) * scale
        logits = torch.where(mask[None, None, :, :], logits, -1e9)
        attn = _softmax(logits, axis=-1)
        o = torch.einsum("bhsw,bhswd->bhsd", attn, vg)
        return (lambda x, *d: x.permute(*d))(o, 0, 2, 1, 3).reshape(B, S, D) @ wo

    def _B_ref(x, w1, w2, w3, w4):
        B, S, D = x.shape
        h = _gelu(_layernorm(x, axis=-1) @ w1)
        c = D // 4
        g0 = _pad(h[:, :, 0*c:1*c], ((0, 0), (1, 0), (0, 0)))[:, :S, :]
        g1 = _pad(h[:, :, 1*c:2*c], ((0, 0), (0, 1), (0, 0)))[:, 1:, :]
        g2 = _pad(h[:, :, 2*c:3*c], ((0, 0), (2, 0), (0, 0)))[:, :S, :]
        g3 = _pad(h[:, :, 3*c:   ], ((0, 0), (0, 2), (0, 0)))[:, 2:, :]
        hs = torch.concatenate([g0, g1, g2, g3], axis=-1) @ w2
        x1 = x + hs
        h2 = _gelu(_layernorm(x1, axis=-1) @ w3) @ w4
        return x1 + h2

    x = A_x
    xn = _layernorm(x, axis=-1)
    return x + _A_ref(xn, A_wqkv, A_wo) + _B_ref(xn, B_w1, B_w2, B_w3, B_w4)
```

```python
import re

def regs_of(op):
    if not isinstance(op, str):
        return set()
    op = op.strip()
    neg = op.lstrip('-')
    if neg.startswith('abs(') or neg.startswith('|'):
        neg = neg.replace('abs(', '').replace(')', '').replace('|', '')
    op = neg
    m = re.fullmatch(r'([vsa])(\d+)', op)
    if m:
        return {op}
    m = re.fullmatch(r'([vsa])\[(\d+):(\d+)\]', op)
    if m:
        return {f"{m.group(1)}{i}" for i in range(int(m.group(2)), int(m.group(3)) + 1)}
    if op in ('vcc', 'vcc_lo', 'vcc_hi'):
        return {'vcc'}
    if op in ('exec', 'exec_lo', 'exec_hi'):
        return {'exec'}
    if op == 'm0':
        return {'m0'}
    return set()

def vr(a, n=1):
    return f"v{a}" if n == 1 else f"v[{a}:{a+n-1}]"
def sr(a, n=1):
    return f"s{a}" if n == 1 else f"s[{a}:{a+n-1}]"

TRANS = ('v_exp_f32', 'v_log_f32', 'v_rcp_f32', 'v_rsq_f32', 'v_sqrt_f32', 'v_sin_f32', 'v_cos_f32', 'v_rcp_iflag_f32')

class Ins:
    __slots__ = ('mn', 'ops', 'mods', 'w', 'r', 'kind', 'passes', 'cread', 'states')

def classify(mn, ops, mods):
    i = Ins(); i.mn = mn; i.ops = ops; i.mods = mods
    w = set(); r = set(); i.passes = 0; i.cread = set(); i.states = 1
    R = lambda *idx: set().union(*[regs_of(ops[k]) for k in idx if k < len(ops)]) if idx else set()
    allr = lambda st: set().union(*[regs_of(o) for o in ops[st:]]) if len(ops) > st else set()
    if mn.startswith('v_mfma'):
        i.kind = 'mfma'; w = R(0); r = allr(1); i.cread = R(3)
        if '32x32x16' in mn or '32x32x8' in mn: i.passes = 8
        elif '4x4x4' in mn: i.passes = 2
        else: i.passes = 4
    elif mn.startswith('v_cmp'):
        i.kind = 'valu'; w = R(0); r = allr(1)
        if mn.startswith('v_cmpx'): w |= {'exec'}
    elif mn in ('v_readfirstlane_b32', 'v_readlane_b32'):
        i.kind = 'valu'; w = R(0); r = allr(1)
    elif mn.startswith('v_permlane') and 'swap' in mn:
        i.kind = 'valu'; w = R(0, 1); r = R(0, 1)
    elif mn.startswith(('v_add_co', 'v_sub_co', 'v_subrev_co')):
        i.kind = 'valu'; w = R(0, 1); r = allr(2)
    elif mn.startswith(('v_addc_co', 'v_subb_co')):
        i.kind = 'valu'; w = R(0, 1); r = allr(2)
    elif mn.startswith('v_'):
        i.kind = 'valu'; w = R(0); r = allr(1)
        if mn.startswith(('v_fmac', 'v_dot2c', 'v_mac', 'v_writelane', 'v_pk_fmac')): r |= R(0)
        if mn.startswith('v_cndmask') and len(ops) == 3: r |= {'vcc'}
        if 'dpp' in mn or any(k in mods for k in ('row_', 'quad_perm', 'wave_')): r |= R(0)
    elif mn.startswith('ds_'):
        i.kind = 'ds'
        if mn.startswith(('ds_read', 'ds_bpermute', 'ds_permute', 'ds_swizzle')) or '_rtn' in mn:
            w = R(0); r = allr(1)
        else:
            r = allr(0)
    elif mn.startswith(('buffer_load', 'global_load')):
        i.kind = 'vmem'
        if 'lds' in mods.split() or '_lds_' in mn:
            r = allr(0) | {'m0'}
        else:
            w = R(0); r = allr(1)
    elif mn.startswith(('buffer_store', 'global_store')):
        i.kind = 'vmem'; r = allr(0)
    elif mn.startswith(('buffer_atomic', 'global_atomic')):
        i.kind = 'vmem'; r = allr(0)
        if 'sc0' in mods.split(): w = R(0)
    elif mn.startswith(('buffer_wbl2', 'buffer_inv')):
        i.kind = 'vmem'
    elif mn.startswith(('s_load', 's_memtime', 's_memrealtime', 's_buffer_load')):
        i.kind = 'smem'; w = R(0); r = allr(1)
    elif mn.startswith('s_'):
        i.kind = 'salu'
        if mn.startswith(('s_cmp', 's_bitcmp')):
            r = allr(0); w = {'scc'}
        elif mn in ('s_waitcnt', 's_barrier', 's_nop', 's_sleep', 's_setprio', 's_endpgm', 's_branch') or mn.startswith('s_cbranch'):
            if mn == 's_nop': i.states = int(ops[0]) + 1
        elif 'saveexec' in mn:
            w = R(0) | {'exec', 'scc'}; r = allr(1) | {'exec'}
        elif mn.startswith('s_getreg'):
            w = R(0)
        else:
            w = R(0) | {'scc'}; r = allr(1)
            if mn.startswith(('s_cselect', 's_addc', 's_subb', 's_cmov')): r |= {'scc'}
            if mn.startswith(('s_addk', 's_mulk')): r |= R(0)
            if mn.startswith(('s_mov', 's_cselect', 's_mul_i32', 's_movk', 's_mul_hi', 's_not')) : w -= {'scc'}
    else:
        raise ValueError("unknown mnemonic " + mn)
    i.w = w; i.r = r
    return i

def isv(s): return s[0] in 'va' and s[1:].isdigit()
def iss(s): return (s[0] == 's' and s[1:].isdigit()) or s == 'vcc'

def need_states(p, c):
    n = 0
    pw_v = {x for x in p.w if isv(x)}
    pw_s = {x for x in p.w if iss(x)}
    if p.kind == 'valu':
        if c.kind == 'mfma' and pw_v & c.r: n = max(n, 2)
        if c.kind == 'mfma' and 'exec' in p.w: n = max(n, 4)
        if c.kind == 'vmem' and pw_s & c.r: n = max(n, 5)
        if c.kind == 'valu':
            isdpp = ('dpp' in c.mn) or any(k in c.mods for k in ('row_', 'quad_perm', 'wave_'))
            if isdpp and pw_v & c.r: n = max(n, 2)
            if isdpp and 'exec' in p.w: n = max(n, 5)
            if c.mn.startswith('v_permlane') and pw_v & c.r: n = max(n, 2)
            if c.mn.startswith('v_permlane') and 'exec' in p.w: n = max(n, 4)
            if c.mn in ('v_readfirstlane_b32', 'v_readlane_b32'):
                if pw_v & c.r: n = max(n, 1)
                if 'exec' in p.w: n = max(n, 4)
                if c.mn == 'v_readlane_b32' and pw_s & c.r: n = max(n, 4)
            if c.mn.startswith('v_writelane') and pw_s & c.r: n = max(n, 4)
            if pw_s & c.r: n = max(n, 2)
            if p.mn in TRANS and c.mn not in TRANS and (pw_v & c.r): n = max(n, 1)
            if p.mn in TRANS and c.mn in TRANS and (pw_v & c.r): n = max(n, 1)
            if ('sdwa' in p.mn or 'op_sel' in p.mods and not p.mn.startswith('v_pk')) and pw_v & c.r: n = max(n, 1)
            if p.mn.startswith('v_dot2') and pw_v & (c.r | c.w) and c.mn != p.mn: n = max(n, 3)
            if p.mn.startswith('v_dot2') and c.mn == p.mn and pw_v & (regs_of(c.ops[1]) | regs_of(c.ops[2])): n = max(n, 3)
        if c.kind == 'salu' and pw_s & c.r: n = max(n, 4)
        if c.kind == 'salu' and 'exec' in p.w and c.mn.startswith('s_cbranch_exec'): n = max(n, 5)
        if c.kind == 'smem' and pw_s & c.r: n = max(n, 5)
    if p.kind == 'mfma':
        D = pw_v
        tab = {2: (2, 4, 5, 5), 4: (0, 6, 8, 8), 8: (0, 10, 12, 12), 16: (0, 18, 20, 20)}[p.passes]
        if c.kind == 'mfma':
            cA = regs_of(c.ops[1]) | regs_of(c.ops[2])
            if D & cA: n = max(n, tab[2])
            if D & c.cread:
                if c.cread == D and c.passes == p.passes: n = max(n, tab[0])
                else: n = max(n, tab[1])
            elif D & c.w:
                n = max(n, tab[1])
        elif c.kind in ('valu', 'vmem', 'ds'):
            if D & (c.r | c.w): n = max(n, tab[3])
        if c.kind == 'valu' and (p.cread & c.w):
            n = max(n, {2: 1, 4: 3, 8: 7, 16: 15}[p.passes])
    if p.kind == 'vmem' and p.mn.endswith(('x3', 'x4')) and 'store' in p.mn:
        data = regs_of(p.ops[0]) if p.mn.startswith('buffer') else regs_of(p.ops[1])
        if c.kind == 'valu' and data & c.w: n = max(n, 2)
        elif c.kind in ('ds', 'vmem', 'mfma') and data & c.w: n = max(n, 1)
    if p.kind == 'salu' and 'm0' in p.w:
        if c.kind == 'vmem' and 'm0' in c.r: n = max(n, 1)
    return n

class Gen:
    def __init__(self):
        self.lines = []
        self.hist = []
        self.lgkm = []
        self.vm = []
        self.nins = 0
        self.autowait = True
        self.vm_total = 0
    def raw(self, text):
        self.lines.append(text)
    def comment(self, text):
        self.lines.append("  ; " + text)
    def label(self, name):
        self.lines.append(name + ":")
    def _emit(self, i):
        ops = ", ".join(str(o) for o in i.ops)
        self.lines.append(f"  {i.mn} {ops} {i.mods}".rstrip())
        self.hist.append(i)
        if len(self.hist) > 24: self.hist.pop(0)
        self.nins += 1
    def _wait_regs(self, regs):
        n = None
        for k, (d, t) in enumerate(self.lgkm):
            if d & regs: n = len(self.lgkm) - 1 - k
        if n is not None: self.wait(lgkm=n)
        n = None
        for k, (d, t) in enumerate(self.vm):
            if d & regs: n = len(self.vm) - 1 - k
        if n is not None: self.wait(vm=n)
    def op(self, mn, *ops, mods=''):
        ops = [o if isinstance(o, str) else (repr(o) if isinstance(o, float) else str(o)) for o in ops]
        i = classify(mn, ops, mods)
        tag = None
        if self.autowait:
            self._wait_regs(i.r | i.w)
        dist = 0; need = 0
        for p in reversed(self.hist):
            k = need_states(p, i) - dist
            if k > need: need = k
            dist += p.states
            if dist > 21: break
        while need > 0:
            k = min(need, 16)
            nop = classify('s_nop', [str(k - 1)], '')
            self._emit(nop); need -= k
        self._emit(i)
        if i.kind == 'ds': self.lgkm.append((set(i.w), None))
        if i.kind == 'vmem':
            self.vm.append((set(i.w), None)); self.vm_total += 1
        if i.kind == 'smem': self.lgkm.append((set(i.w), 'smem'))
        return i
    def guard_begin(self):
        self._gmark = self.nins
        self._gvm = len(self.vm); self._glg = len(self.lgkm)
    def guard_end(self):
        n = self.nins - self._gmark
        for p in self.hist[max(0, len(self.hist) - n):]:
            q = p
            q.states = 0
    def div_begin(self):
        self._dstack = getattr(self, '_dstack', [])
        self._dstack.append((list(self.vm), list(self.lgkm), self.nins, self.vm_total))
    def div_end(self, keep_vm_as=None):
        vm, lg, n0, tot = self._dstack.pop()
        self.vm = vm; self.lgkm = lg; self.vm_total = tot
        n = self.nins - n0
        for p in self.hist[max(0, len(self.hist) - n):]:
            p.states = 0
    def mark(self):
        return self.vm_total
    def wait_mark(self, mark):
        n = min(self.vm_total - mark, 63)
        self._emit(classify('s_waitcnt', [f"vmcnt({n})"], ''))
        if len(self.vm) > n: self.vm = self.vm[len(self.vm) - n:] if n else []
    def tag_last_vm(self, tag):
        d, _ = self.vm[-1]; self.vm[-1] = (d, tag)
    def wait(self, vm=None, lgkm=None):
        parts = []
        if vm is not None:
            vm = min(vm, 63)
            if len(self.vm) > vm:
                parts.append(f"vmcnt({vm})"); self.vm = self.vm[len(self.vm) - vm:] if vm else []
        if lgkm is not None:
            if any(t == 'smem' for d, t in self.lgkm): lgkm = 0
            lgkm = min(lgkm, 15)
            if len(self.lgkm) > lgkm:
                parts.append(f"lgkmcnt({lgkm})"); self.lgkm = self.lgkm[len(self.lgkm) - lgkm:] if lgkm else []
        if parts:
            self._emit(classify('s_waitcnt', [" ".join(parts)], ''))
    def wait_tag(self, tag):
        n = None
        for k, (d, t) in enumerate(self.vm):
            if t == tag: n = len(self.vm) - 1 - k
        if n is not None: self.wait(vm=n)
    def waitall(self):
        self.wait(vm=0, lgkm=0)
    def force_wait(self, text):
        self._emit(classify('s_waitcnt', [text], ''))
    def barrier(self):
        self.op('s_barrier')
    def text(self):
        return "\n".join(self.lines) + "\n"
```

```python
import sys, os
sys.path.insert(0, os.path.dirname(os.path.abspath(__file__)))
from asmlib import *

NAME = "parallel_sum__sliding_local_dilated__mixer_s_mlp__prompt"
WS = dict(H=0x000000, O=0x200000, X1=0x400000, H2A=0x600000, X1ST=0xC00000, HALO=0xC40000,
          FLAGS=0xE00000, EPOCH=0xE10000, STAMP=0xF00000)
WS_SIZE = 0x1000000
H2A_PITCH = 2816
OPT = dict(upto=os.environ.get("UPTO", "all"), stamps=int(os.environ.get("GSTAMPS", "0")))

S_X, S_WQKV, S_W1, S_W2, S_WO, S_W3, S_W4, S_OUT, S_WS, S_H = 4, 8, 12, 16, 20, 24, 28, 32, 36, 40
sRB, sCG, sW, sT, sFI, sROT = 46, 47, 48, 49, 50, 51
sRU, sCH = 44, 45
sT0, sT1, sT2, sT3, sT4, sT5 = 74, 75, 76, 77, 78, 79
sMSKA, sMSKB = 80, 81
sSTAMP = 84
sSOFF = 86

L_X = 0
L_W = 65536
L_R = 131072
L_SCR = 155648
RING = [L_R, L_W, L_W + 24576]
SC_RS = L_SCR
SC_SQ = L_SCR + 512
SC_CS = L_SCR + 1024
SC_CQ = L_SCR + 2048
SC_X1 = L_SCR + 4096

vTID, vLANE, vL15, vG = 0, 1, 2, 3
vT = list(range(4, 16))
vXA, vB1, vB3 = 16, 17, 18
vH = [19, 20, 21, 22]
vM, vRS1 = 23, 24
vXR = 25
vXR = 26
vONES = 30
vBASE = 34
aX0, aX1 = 42, 43
aW0, aW1, aW2 = 44, 45, 46
aX0h, aX1h = 47, 48
aW0h, aW1h = 49, 50
FR = 64
ACC = 128

g = Gen()
def op(mn, *a, mods=''): return g.op(mn, *a, mods=mods)

_stamp_n = [0]
def stamp():
    if not OPT['stamps']: return
    n = _stamp_n[0]; _stamp_n[0] += 1
    op('s_memrealtime', sr(sSTAMP, 2))
    g.wait(lgkm=0)
    op('v_mov_b32', vr(62), sr(sSTAMP))
    op('buffer_store_dword', vr(62), vr(61), sr(S_WS, 4), 0, mods=f'offen offset:{4*n}')
    g.vm.pop()

def srd(dst, lo, hi, size):
    op('s_mov_b32', sr(dst), sr(lo))
    op('s_and_b32', sr(dst + 1), sr(hi), 0xffff)
    op('s_mov_b32', sr(dst + 2), size)
    op('s_mov_b32', sr(dst + 3), 0x20000)

def dma(voff, srdreg, soff, lds, tag=None):
    raise NotImplementedError

def set_m0(base_imm, wave_mul):
    if wave_mul == 1024:
        op('s_add_u32', 'm0', sr(sT5), base_imm)
    else:
        raise NotImplementedError

def dma1(voff, srdreg, soff, ldsbase, tag):
    set_m0(ldsbase, 1024)
    op('buffer_load_dwordx4', vr(voff), sr(srdreg, 4), soff, mods='offen lds')
    g.tag_last_vm(tag)

def mfma(d, a, b, c=None):
    c = vr(d, 4) if c is None else c
    op('v_mfma_f32_16x16x32_bf16', vr(d, 4), vr(a, 4), vr(b, 4), c)

def guard(cond_mask, bit, label, body):
    op('s_bitcmp1_b32', sr(cond_mask), bit)
    op('s_cbranch_scc0', label)
    g.guard_begin()
    body()
    g.guard_end()
    g.label(label)

def prologue():
    op('s_cmp_ge_u32', 's2', 256)
    op('s_cbranch_scc1', 'L_END')
    op('s_load_dwordx16', 's[52:67]', 's[0:1]', 0)
    op('s_load_dwordx4', 's[68:71]', 's[0:1]', 64)
    op('s_load_dwordx2', 's[72:73]', 's[0:1]', 80)
    op('v_and_b32', vr(vLANE), 63, vr(vTID))
    op('v_lshrrev_b32', vr(4), 6, vr(vTID))
    op('v_and_b32', vr(vL15), 15, vr(vTID))
    op('v_readfirstlane_b32', sr(sW), vr(4))
    op('v_lshrrev_b32', vr(vG), 4, vr(vLANE))
    op('s_and_b32', sr(sT0), 's2', 7)
    op('s_lshl_b32', sr(sT0), sr(sT0), 2)
    op('s_lshr_b32', sr(sT1), 's2', 6)
    op('s_add_u32', sr(sRB), sr(sT0), sr(sT1))
    op('s_lshr_b32', sr(sT0), 's2', 3)
    op('s_and_b32', sr(sCG), sr(sT0), 7)
    op('s_lshl_b32', sr(sFI), sr(sRB), 3)
    op('s_add_u32', sr(sFI), sr(sFI), sr(sCG))
    op('s_and_b32', sr(sRU), sr(sW), 3)
    op('s_lshr_b32', sr(sCH), sr(sW), 2)
    op('s_lshl_b32', sr(sT5), sr(sW), 10)
    op('v_lshrrev_b32', vr(4), 3, vr(vLANE))
    op('s_and_b32', sr(sT0), sr(sW), 1)
    op('s_lshl_b32', sr(sT1), sr(sT0), 2)
    op('v_add_u32', vr(5), sr(sT1), vr(vG))
    op('v_and_b32', vr(6), 7, vr(vLANE))
    op('v_xor_b32', vr(5), vr(5), vr(6))
    op('v_lshlrev_b32', vr(5), 4, vr(5))
    op('s_lshl_b32', sr(sT2), sr(sRB), 6)
    op('s_lshl_b32', sr(sT3), sr(sW), 3)
    op('s_add_u32', sr(sT2), sr(sT2), sr(sT3))
    op('v_add_u32', vr(7), sr(sT2), vr(4))
    op('v_lshlrev_b32', vr(vXA), 10, vr(7))
    op('v_add_u32', vr(vXA), vr(vXA), vr(5))
    op('v_and_b32', vr(8), 1, vr(vG))
    op('s_lshl_b32', sr(sT1), sr(sT0), 1)
    op('v_or_b32', vr(8), sr(sT1), vr(8))
    op('v_lshrrev_b32', vr(9), 1, vr(6))
    op('v_xor_b32', vr(8), vr(8), vr(9))
    op('v_lshlrev_b32', vr(8), 5, vr(8))
    op('v_and_b32', vr(9), 1, vr(vLANE))
    op('v_lshlrev_b32', vr(9), 4, vr(9))
    op('v_add_u32', vr(8), vr(8), vr(9))
    op('s_lshl_b32', sr(sT1), sr(sCG), 7)
    op('v_add_u32', vr(8), sr(sT1), vr(8))
    op('v_add_u32', vr(9), sr(sT3), vr(4))
    op('v_lshlrev_b32', vr(vB1), 10, vr(9))
    op('v_add_u32', vr(vB1), vr(vB1), vr(8))
    op('v_mul_u32_u24', vr(vB3), 3072, vr(9))
    op('v_add_u32', vr(vB3), vr(vB3), vr(8))
    for i, dlt in enumerate((-1, 1, -2, 2)):
        op('v_add_u32', vr(10), dlt, vr(7))
        op('v_lshlrev_b32', vr(vH[i]), 10, vr(10))
        op('v_add_u32', vr(vH[i]), vr(vH[i]), vr(5))
        if dlt < 0:
            op('v_cmp_gt_i32', 'vcc', 0, vr(10))
            op('v_mov_b32', vr(11), 0x7f000000)
            op('v_cndmask_b32', vr(vH[i]), vr(vH[i]), vr(11), 'vcc')
    g.wait(lgkm=0)
    srd(S_WS, 72, 73, WS_SIZE)
    op('v_mov_b32', vr(10), WS['EPOCH'])
    op('buffer_load_dword', vr(60), vr(10), sr(S_WS, 4), 0, mods='offen sc1')
    srd(S_X, 52, 53, 2048 * 1024)
    srd(S_W1, 60, 61, 512 * 1024)
    op('s_and_b32', sr(sROT), sr(sRB), 7)
    for s in range(8):
        op('s_add_u32', sr(sT0), sr(sROT), s)
        op('s_and_b32', sr(sT0), sr(sT0), 7)
        op('s_lshl_b32', sr(sT1), sr(sT0), 7)
        op('s_lshl_b32', sr(sT2), sr(sT0), 16)
        dma1(vXA, S_X, sr(sT1), L_X + 8192 * s, f'x{s}')
        dma1(vB1, S_W1, sr(sT2), L_W + 8192 * s, f'w1_{s}')
    srd(S_WQKV, 54, 55, 512 * 3072)
    qkv_stage_load(0)
    srd(S_H, 72, 73, 2048 * 1024)
    srd(S_WO, 56, 57, 512 * 1024)
    srd(S_W2, 62, 63, 512 * 1024)
    srd(S_W3, 64, 65, 512 * 2752)
    srd(S_W4, 66, 67, 1376 * 1024)
    srd(S_OUT, 68, 69, 2048 * 1024)
    op('s_lshl_b32', sr(sT0), 's2', 3)
    op('s_add_u32', sr(sT0), sr(sT0), sr(sW))
    op('s_lshl_b32', sr(sT0), sr(sT0), 7)
    op('s_add_u32', sr(sT0), sr(sT0), WS['STAMP'])
    op('v_mov_b32', vr(61), sr(sT0))
    op('v_lshrrev_b32', vr(4), 1, vr(vL15))
    op('v_xor_b32', vr(4), vr(4), vr(vG))
    op('v_lshlrev_b32', vr(4), 4, vr(4))
    op('v_lshl_add_u32', vr(4), vr(vL15), 7, vr(4))
    op('v_mov_b32', vr(51), vr(4))
    op('s_lshl_b32', sr(sT0), sr(sRU), 11)
    op('v_add_u32', vr(aX0), sr(sT0), vr(4))
    op('v_xor_b32', vr(aX1), 64, vr(aX0))
    op('v_add_u32', vr(aX0h), 65536, vr(aX0))
    op('v_add_u32', vr(aX1h), 65536, vr(aX1))
    op('v_lshrrev_b32', vr(5), 2, vr(vL15))
    op('v_lshl_add_u32', vr(6), vr(vG), 3, vr(5))
    op('v_lshlrev_b32', vr(6), 7, vr(6))
    op('v_and_b32', vr(7), 3, vr(vLANE))
    op('v_lshl_add_u32', vr(6), vr(7), 3, vr(6))
    op('v_lshrrev_b32', vr(5), 1, vr(5))
    op('v_and_b32', vr(7), 1, vr(vG))
    op('v_lshl_or_b32', vr(5), vr(7), 1, vr(5))
    op('v_mov_b32', vr(52), vr(6))
    op('v_mov_b32', vr(53), vr(5))
    op('s_lshl_b32', sr(sT0), sr(sCH), 1)
    for u, (lo, hi) in enumerate(((aW0, aW0h), (aW1, aW1h))):
        op('s_add_u32', sr(sT1), sr(sT0), u)
        op('v_xor_b32', vr(7), sr(sT1), vr(5))
        op('v_lshl_add_u32', vr(lo), vr(7), 5, vr(6))
        op('v_add_u32', vr(hi), 65536, vr(lo))
    for i in range(4):
        op('v_mov_b32', vr(vONES + i), 0x3f803f80)

def qkv_stage_load(s):
    slot = RING[s % 3]
    op('s_add_u32', sr(sT0), sr(sROT), s)
    op('s_and_b32', sr(sT0), sr(sT0), 7)
    op('s_mul_i32', sr(sT2), sr(sT0), 64 * 3072)
    for j in range(3):
        if j: op('s_add_u32', sr(sT2), sr(sT2), 1024)
        dma1(vB3, S_WQKV, sr(sT2), slot + 8192 * j, f'q{s}')

def rd_x(dst, addr, off):
    op('ds_read_b128', vr(dst, 4), vr(addr), mods=f'offset:{off}')
def rd_w(dst, addr, off):
    op('ds_read_b64_tr_b16', vr(dst, 2), vr(addr), mods=f'offset:{off}')
    op('ds_read_b64_tr_b16', vr(dst + 2, 2), vr(addr), mods=f'offset:{off + 512}')

def cross_g_sum(v, t):
    op('v_mov_b32', vr(t), vr(v))
    op('v_permlane16_swap_b32', vr(v), vr(t))
    op('v_add_f32', vr(v), vr(v), vr(t))
    op('v_mov_b32', vr(t), vr(v))
    op('v_permlane32_swap_b32', vr(v), vr(t))
    op('v_add_f32', vr(v), vr(v), vr(t))

GC1 = -2.0 * 0.7978845608028654 * 1.4426950408889634
GC2 = GC1 * 0.044715
import struct
def f2u(x): return struct.unpack('<I', struct.pack('<f', x))[0]
sGC1, sGC2 = 82, 83
def gelu_setup():
    op('s_mov_b32', sr(sGC1), f2u(GC1))
    op('s_mov_b32', sr(sGC2), f2u(GC2))
def gelu_list(regs, tmp):
    for x, t in zip(regs, tmp): op('v_mul_f32', vr(t), vr(x), vr(x))
    for x, t in zip(regs, tmp): op('v_fma_f32', vr(t), vr(t), sr(sGC2), vr(59))
    for x, t in zip(regs, tmp): op('v_mul_f32', vr(t), vr(t), vr(x))
    for x, t in zip(regs, tmp): op('v_exp_f32', vr(t), vr(t))
    for x, t in zip(regs, tmp): op('v_add_f32', vr(t), 1.0, vr(t))
    for x, t in zip(regs, tmp): op('v_rcp_f32', vr(t), vr(t))
    for x, t in zip(regs, tmp): op('v_mul_f32', vr(x), vr(x), vr(t))

def row_stats(dM, dRS, rowaddr, t0, t1, t2, t3):
    op('ds_read_b32', vr(t0), vr(rowaddr), mods=f'offset:{SC_RS - L_SCR}')
    op('ds_read_b32', vr(t1), vr(rowaddr), mods=f'offset:{SC_RS - L_SCR + 256}')
    op('ds_read_b32', vr(t2), vr(rowaddr), mods=f'offset:{SC_SQ - L_SCR}')
    op('ds_read_b32', vr(t3), vr(rowaddr), mods=f'offset:{SC_SQ - L_SCR + 256}')
    op('v_add_f32', vr(t0), vr(t0), vr(t1))
    op('v_add_f32', vr(t2), vr(t2), vr(t3))
    op('v_mul_f32', vr(dM), f2u(1.0 / 512), vr(t0))
    op('v_mul_f32', vr(t2), f2u(1.0 / 512), vr(t2))
    op('v_fma_f32', vr(t2), f'-{vr(dM)}', vr(dM), vr(t2))
    op('v_max_f32', vr(t2), 0, vr(t2))
    op('v_add_f32', vr(t1), f2u(1e-5), vr(t2))
    op('v_rsq_f32', vr(dRS), vr(t1))

def phase1a():
    g.comment("==== P1a: h tile ====")
    A0, A1, RS, SQ, C0, C1 = ACC, ACC + 4, ACC + 8, ACC + 12, ACC + 16, ACC + 20
    for r in range(ACC, ACC + 24): op('v_mov_b32', vr(r), 0)
    op('s_lshl_b32', sr(sMSKA), 0x5555, sr(sCH))
    op('s_lshl_b32', sr(sMSKB), 0x1111, sr(sRU))
    gelu_setup()
    op('v_mov_b32', vr(59), sr(sGC1))
    for s in range(8):
        g.wait_tag(f'x{s}'); g.wait_tag(f'w1_{s}')
        g.barrier()
        if s == 3: qkv_stage_load(1)
        if s == 6: qkv_stage_load(2)
        for j in range(2):
            f = FR + 12 * j
            rd_x(f, aX0 if j == 0 else aX1, 8192 * s)
            rd_w(f + 4, aW0h, 8192 * s + 4096 * j)
            rd_w(f + 8, aW1h, 8192 * s + 4096 * j)
        for j in range(2):
            t = 2 * s + j
            f = FR + 12 * j
            mfma(A0, f + 4, f)
            mfma(A1, f + 8, f)
            guard(sMSKA, t, f'L1a_{t}a', lambda: (mfma(RS, vONES, f), mfma(SQ, f, f)))
            guard(sMSKB, t, f'L1a_{t}b', lambda: (mfma(C0, f + 4, vONES), mfma(C1, f + 8, vONES)))
    stamp()
    op('v_readfirstlane_b32', sr(sT), vr(60))
    op('s_add_u32', sr(sT), sr(sT), 8)
    op('s_sub_u32', sr(sT0), sr(sCG), sr(sROT))
    op('s_and_b32', sr(sT0), sr(sT0), 7)
    op('s_lshl_b32', sr(sT0), sr(sT0), 13)
    op('s_lshl_b32', sr(sT1), sr(sRU), 11)
    op('s_add_u32', sr(sT0), sr(sT0), sr(sT1))
    op('v_lshrrev_b32', vr(4), 1, vr(vG))
    op('s_lshl_b32', sr(sT1), sr(sCH), 2)
    op('v_add_u32', vr(4), sr(sT1), vr(4))
    op('v_lshrrev_b32', vr(5), 1, vr(vL15))
    op('v_and_b32', vr(6), 1, vr(vG))
    op('v_lshlrev_b32', vr(6), 3, vr(6))
    op('v_lshl_add_u32', vr(6), vr(vL15), 7, vr(6))
    op('v_add_u32', vr(6), sr(sT0), vr(6))
    for u in range(2):
        op('v_add_u32', vr(7), 2 * u, vr(4))
        op('v_xor_b32', vr(7), vr(7), vr(5))
        op('v_lshl_add_u32', vr(7), vr(7), 4, vr(6))
        op('ds_read_b64', vr(vXR + 2 * u, 2), vr(7))
    op('s_lshl_b32', sr(sT0), sr(sCH), 8)
    op('s_lshl_b32', sr(sT1), sr(sRU), 6)
    op('s_add_u32', sr(sT0), sr(sT0), sr(sT1))
    op('s_add_u32', sr(sT0), sr(sT0), L_SCR)
    op('v_lshlrev_b32', vr(8), 2, vr(vL15))
    op('v_add_u32', vr(8), sr(sT0), vr(8))
    op('ds_write_b32', vr(8), vr(RS), mods=f'offset:{SC_RS - L_SCR}')
    op('v_and_b32', vr(9), 3, vr(vL15))
    op('v_cmp_eq_u32', 'vcc', 1, vr(9))
    op('v_cndmask_b32', vr(10), vr(SQ), vr(SQ + 1), 'vcc')
    op('v_cmp_eq_u32', 'vcc', 2, vr(9))
    op('v_cndmask_b32', vr(10), vr(10), vr(SQ + 2), 'vcc')
    op('v_cmp_eq_u32', 'vcc', 3, vr(9))
    op('v_cndmask_b32', vr(10), vr(10), vr(SQ + 3), 'vcc')
    op('v_lshrrev_b32', vr(9), 2, vr(vL15))
    op('v_cmp_eq_u32', 'vcc', vr(9), vr(vG))
    op('s_and_saveexec_b64', 's[88:89]', 'vcc')
    op('ds_write_b32', vr(8), vr(10), mods=f'offset:{SC_SQ - L_SCR}')
    op('s_mov_b64', 'exec', 's[88:89]')
    op('s_lshl_b32', sr(sT0), sr(sRU), 8)
    op('s_lshl_b32', sr(sT1), sr(sCH), 7)
    op('s_add_u32', sr(sT0), sr(sT0), sr(sT1))
    op('s_add_u32', sr(sT0), sr(sT0), SC_CS)
    op('v_lshlrev_b32', vr(9), 4, vr(vG))
    op('v_add_u32', vr(9), sr(sT0), vr(9))
    op('v_cmp_eq_u32', 'vcc', 0, vr(vL15))
    op('s_and_saveexec_b64', 's[88:89]', 'vcc')
    op('ds_write_b128', vr(9), vr(C0, 4))
    op('ds_write_b128', vr(9), vr(C1, 4), mods='offset:64')
    op('s_mov_b64', 'exec', 's[88:89]')
    g.wait(lgkm=0)
    g.barrier()
    op('s_lshl_b32', sr(sT1), sr(sRU), 6)
    op('s_add_u32', sr(sT1), sr(sT1), L_SCR)
    op('v_lshlrev_b32', vr(8), 2, vr(vL15))
    op('v_add_u32', vr(8), sr(sT1), vr(8))
    op('s_lshl_b32', sr(sT1), sr(sCH), 7)
    op('s_add_u32', sr(sT1), sr(sT1), SC_CS)
    op('v_lshlrev_b32', vr(9), 4, vr(vG))
    op('v_add_u32', vr(9), sr(sT1), vr(9))
    F = FR
    for q in range(4):
        op('ds_read_b128', vr(F + 8 * q, 4), vr(9), mods=f'offset:{256 * q}')
        op('ds_read_b128', vr(F + 8 * q + 4, 4), vr(9), mods=f'offset:{256 * q + 64}')
    row_stats(vM, vRS1, 8, 10, 11, 12, 13)
    op('v_mul_f32', vr(10), vr(vRS1), vr(vRS1))
    op('v_mov_b32', vr(11), f2u(1e-5))
    op('v_fma_f32', vr(10), vr(12), vr(10), vr(11))
    op('v_rsq_f32', vr(10), vr(10))
    op('v_mul_f32', vr(14), vr(vRS1), vr(10))
    for i in range(8):
        op('v_add_f32', vr(F + i), vr(F + i), vr(F + 8 + i))
        op('v_add_f32', vr(F + 16 + i), vr(F + 16 + i), vr(F + 24 + i))
    for i in range(8):
        op('v_add_f32', vr(F + i), vr(F + i), vr(F + 16 + i))
    for i in range(8):
        op('v_fma_f32', vr(A0 + i), f'-{vr(vM)}', vr(F + i), vr(A0 + i))
    for i in range(8):
        op('v_mul_f32', vr(A0 + i), vr(14), vr(A0 + i))
    gelu_list([A0 + i for i in range(8)], [F + 32 + i for i in range(8)])
    P = F + 40
    for i in range(4):
        op('v_cvt_pk_bf16_f32', vr(P + i), vr(A0 + 2 * i), vr(A0 + 2 * i + 1))
    op('v_permlane16_swap_b32', vr(P), vr(P + 2))
    op('v_permlane16_swap_b32', vr(P + 1), vr(P + 3))
    tile_store_offset(15)
    op('buffer_store_dwordx4', vr(P, 4), vr(15), sr(S_WS, 4), 0, mods=f'offen sc1')
    g.tag_last_vm('hstore')

def tile_store_offset(dst):
    op('s_lshl_b32', sr(sT0), sr(sRB), 6)
    op('s_lshl_b32', sr(sT1), sr(sRU), 4)
    op('s_add_u32', sr(sT0), sr(sT0), sr(sT1))
    op('v_add_u32', vr(4), sr(sT0), vr(vL15))
    op('v_lshlrev_b32', vr(4), 10, vr(4))
    op('v_and_b32', vr(5), 1, vr(vG))
    op('v_lshlrev_b32', vr(5), 5, vr(5))
    op('v_lshrrev_b32', vr(6), 1, vr(vG))
    op('v_lshl_add_u32', vr(5), vr(6), 4, vr(5))
    op('s_lshl_b32', sr(sT0), sr(sCG), 7)
    op('s_lshl_b32', sr(sT1), sr(sCH), 6)
    op('s_add_u32', sr(sT0), sr(sT0), sr(sT1))
    op('v_add3_u32', vr(dst), vr(4), vr(5), sr(sT0))


MARKS = {}
POLL_LIMIT = 200000
def wave0_begin(lbl):
    op('s_cmp_eq_u32', sr(sW), 0)
    op('s_cbranch_scc0', lbl)
    g.div_begin()
def wave0_end(lbl):
    g.div_end()
    g.label(lbl)

_lab = [0]
def newlab(p):
    _lab[0] += 1
    return f'L_{p}_{_lab[0]}'

def publish(phase):
    lbl = newlab('pub')
    wave0_begin(lbl)
    op('s_add_u32', sr(sT0), sr(sT), phase)
    op('v_mov_b32', vr(12), sr(sT0))
    op('s_lshl_b32', sr(sT1), sr(sFI), 7)
    op('s_add_u32', sr(sT1), sr(sT1), WS['FLAGS'])
    op('v_mov_b32', vr(13), sr(sT1))
    op('s_mov_b64', 's[88:89]', 'exec')
    op('s_mov_b64', 'exec', 1)
    op('buffer_store_dword', vr(12), vr(13), sr(S_WS, 4), 0, mods='offen sc1')
    op('s_mov_b64', 'exec', 's[88:89]')
    wave0_end(lbl)

def poll(first, n, phase):
    lbl = newlab('poll')
    wave0_begin(lbl)
    op('v_add_u32', vr(12), sr(first), vr(vLANE))
    op('v_cmp_gt_u32', 'vcc', 256, vr(12))
    op('v_cmp_gt_u32', 's[88:89]', n, vr(vLANE))
    op('s_and_b64', 'vcc', 'vcc', 's[88:89]')
    op('v_mov_b32', vr(13), sr(sFI))
    op('v_cndmask_b32', vr(12), vr(13), vr(12), 'vcc')
    op('v_lshlrev_b32', vr(12), 7, vr(12))
    op('v_add_u32', vr(63), WS['FLAGS'], vr(12))
    op('s_add_u32', sr(sT0), sr(sT), phase)
    op('s_mov_b32', sr(sT1), 0)
    loop = newlab('pl'); done = newlab('pd')
    g.label(loop)
    op('buffer_load_dword', vr(12), vr(63), sr(S_WS, 4), 0, mods='offen sc1')
    g.force_wait('vmcnt(0)'); g.vm = []
    op('v_subrev_u32', vr(12), sr(sT0), vr(12))
    op('v_cmp_ge_u32', 'vcc', 7 - phase, vr(12))
    op('s_cmp_eq_u64', 'vcc', 'exec')
    op('s_cbranch_scc1', done)
    op('s_sleep', 1)
    op('s_add_u32', sr(sT1), sr(sT1), 1)
    op('s_cmp_lt_u32', sr(sT1), POLL_LIMIT)
    op('s_cbranch_scc1', loop)
    g.label(done)
    wave0_end(lbl)

aQx0, aQx1, aQA, aQB, aQC = 54, 55, 56, 57, 58
def w2_chunk_load(i):
    op('s_mov_b32', sr(sT2), 65536 * i)
    dma1(vB1, S_W2, sr(sT2), L_X + 8192 * i, f'w2_{i}')

def phase1b():
    g.comment("==== P1b: q,k,v tiles ====")
    Q0, Q1, K0, K1, V0, V1, CQ, CK, CV = [ACC + 4 * i for i in range(9)]
    for r in range(ACC, ACC + 36): op('v_mov_b32', vr(r), 0)
    op('s_lshl_b32', sr(sT0), sr(sCH), 12)
    op('v_add_u32', vr(aQx0), sr(sT0), vr(51))
    op('v_xor_b32', vr(aQx1), 64, vr(aQx0))
    op('v_xor_b32', vr(4), sr(sRU), vr(53))
    op('v_lshl_add_u32', vr(4), vr(4), 5, vr(52))
    for reg, base in zip((aQA, aQB, aQC), RING):
        op('v_add_u32', vr(reg), base, vr(4))
    for s in range(8):
        g.wait_tag(f'q{s}')
        if s == 1: g.wait_tag('hstore')
        g.barrier()
        if s == 1: publish(1)
        if s >= 1 and s + 2 < 8: qkv_stage_load(s + 2)
        if s >= 1: w2_chunk_load(s - 1)
        slot = (aQA, aQB, aQC)[s % 3]
        for j in range(2):
            f = FR + 20 * j
            ax = aQx0 if j == 0 else aQx1
            rd_x(f, ax, 8192 * s)
            rd_w(f + 8, slot, 4096 * j)
            rd_x(f + 4, ax, 8192 * s + 2048)
            rd_w(f + 12, slot, 8192 + 4096 * j)
            rd_w(f + 16, slot, 16384 + 4096 * j)
        for j in range(2):
            t = 2 * s + j
            f = FR + 20 * j
            mfma(Q0, f + 8, f); mfma(Q1, f + 8, f + 4)
            mfma(K0, f + 12, f); mfma(K1, f + 12, f + 4)
            mfma(V0, f + 16, f); mfma(V1, f + 16, f + 4)
            guard(sMSKA, t, f'L1b_{t}', lambda: (mfma(CQ, f + 8, vONES), mfma(CK, f + 12, vONES), mfma(CV, f + 16, vONES)))
    g.wait(lgkm=0)
    stamp()
    op('s_mul_i32', sr(sT0), sr(sCH), 768)
    op('s_lshl_b32', sr(sT1), sr(sRU), 6)
    op('s_add_u32', sr(sT0), sr(sT0), sr(sT1))
    op('s_add_u32', sr(sT0), sr(sT0), SC_CQ)
    op('v_lshlrev_b32', vr(9), 4, vr(vG))
    op('v_add_u32', vr(9), sr(sT0), vr(9))
    op('v_cmp_eq_u32', 'vcc', 0, vr(vL15))
    op('s_and_saveexec_b64', 's[88:89]', 'vcc')
    op('ds_write_b128', vr(9), vr(CQ, 4))
    op('ds_write_b128', vr(9), vr(CK, 4), mods='offset:256')
    op('ds_write_b128', vr(9), vr(CV, 4), mods='offset:512')
    op('s_mov_b64', 'exec', 's[88:89]')
    op('s_lshl_b32', sr(sT4), sr(sRB), 3)
    op('s_sub_u32', sr(sT4), sr(sT4), 8)
    poll(sT4, 24, 1)
    g.wait(lgkm=0)
    g.barrier()
    w2_chunk_load(7)
    for c in range(8):
        op('s_mov_b32', sr(sT2), 128 * c)
        set_m0(L_W + 8192 * c, 1024)
        op('buffer_load_dwordx4', vr(vH[c >> 1]), sr(S_H, 4), sr(sT2), mods='offen sc1 lds')
        g.tag_last_vm(f'h{c}')
    stamp()
    F = FR
    op('s_lshl_b32', sr(sT1), sr(sRU), 6)
    op('s_add_u32', sr(sT1), sr(sT1), SC_CQ)
    op('v_lshlrev_b32', vr(9), 4, vr(vG))
    op('v_add_u32', vr(9), sr(sT1), vr(9))
    for j in range(3):
        op('ds_read_b128', vr(F + 4 * j, 4), vr(9), mods=f'offset:{256 * j}')
        op('ds_read_b128', vr(F + 12 + 4 * j, 4), vr(9), mods=f'offset:{768 + 256 * j}')
    op('s_lshl_b32', sr(sT1), sr(sCH), 7)
    op('s_add_u32', sr(sT1), sr(sT1), L_SCR)
    op('v_lshlrev_b32', vr(8), 2, vr(vL15))
    op('v_add_u32', vr(8), sr(sT1), vr(8))
    MA, RA, MB, RB = F + 24, F + 25, F + 26, F + 27
    row_stats(MA, RA, 8, 10, 11, 12, 13)
    op('v_add_u32', vr(8), 64, vr(8))
    row_stats(MB, RB, 8, 10, 11, 12, 13)
    for i in range(12):
        op('v_add_f32', vr(F + i), vr(F + i), vr(F + 12 + i))
    op('v_lshrrev_b32', vr(4), 1, vr(vG))
    op('s_lshl_b32', sr(sT1), sr(sRU), 1)
    op('v_add_u32', vr(4), sr(sT1), vr(4))
    op('v_lshrrev_b32', vr(5), 1, vr(vL15))
    op('v_xor_b32', vr(4), vr(4), vr(5))
    op('v_lshlrev_b32', vr(4), 4, vr(4))
    op('v_and_b32', vr(5), 1, vr(vG))
    op('v_lshl_add_u32', vr(4), vr(5), 3, vr(4))
    op('v_lshl_add_u32', vr(4), vr(vL15), 7, vr(4))
    op('s_lshl_b32', sr(sT1), sr(sCH), 12)
    op('s_add_u32', sr(sT1), sr(sT1), L_R)
    op('v_add_u32', vr(4), sr(sT1), vr(4))
    for j, (T0, T1) in enumerate(((Q0, Q1), (K0, K1), (V0, V1))):
        for i, (T_, M_, R_) in enumerate(((T0, MA, RA), (T1, MB, RB))):
            for r in range(4):
                op('v_fma_f32', vr(T_ + r), f'-{vr(M_)}', vr(F + 4 * j + r), vr(T_ + r))
            for r in range(4):
                op('v_mul_f32', vr(T_ + r), vr(R_), vr(T_ + r))
            P = F + 28 + 2 * (2 * j + i)
            op('v_cvt_pk_bf16_f32', vr(P), vr(T_), vr(T_ + 1))
            op('v_cvt_pk_bf16_f32', vr(P + 1), vr(T_ + 2), vr(T_ + 3))
            op('ds_write_b64', vr(4), vr(P, 2), mods=f'offset:{8192 * j + 2048 * i}')
    g.wait(lgkm=0)
    g.barrier()
    lbl = newlab('halo')
    op('s_cmp_lt_u32', sr(sW), 4)
    op('s_cbranch_scc0', lbl)
    g.div_begin()
    op('s_lshr_b32', sr(sT0), sr(sW), 1)
    op('s_add_u32', sr(sT0), sr(sT0), 1)
    op('s_lshl_b32', sr(sT0), sr(sT0), 13)
    op('s_and_b32', sr(sT1), sr(sW), 1)
    op('s_lshl_b32', sr(sT2), sr(sT1), 10)
    op('s_add_u32', sr(sT0), sr(sT0), sr(sT2))
    op('s_add_u32', sr(sT0), sr(sT0), L_R + 48 * 128)
    op('v_lshrrev_b32', vr(4), 3, vr(vLANE))
    op('s_lshl_b32', sr(sT1), sr(sT1), 2)
    op('v_add_u32', vr(5), sr(sT1), vr(vG))
    op('v_and_b32', vr(6), 7, vr(vLANE))
    op('v_xor_b32', vr(5), vr(5), vr(6))
    op('v_lshlrev_b32', vr(5), 4, vr(5))
    op('v_lshl_add_u32', vr(5), vr(4), 7, vr(5))
    op('v_add_u32', vr(5), sr(sT0), vr(5))
    op('ds_read_b128', vr(F, 4), vr(5))
    op('s_lshl_b32', sr(sT0), sr(sFI), 12)
    op('s_add_u32', sr(sT0), sr(sT0), sr(sT5))
    op('s_add_u32', sr(sT0), sr(sT0), WS['HALO'])
    op('v_lshlrev_b32', vr(6), 4, vr(vLANE))
    op('v_add_u32', vr(6), sr(sT0), vr(6))
    op('buffer_store_dwordx4', vr(F, 4), vr(6), sr(S_WS, 4), 0, mods='offen sc1')
    g.div_end()
    g.label(lbl)
    MARKS['halo'] = g.mark()

def small_gemm(A0, A1, nch, aregs, wregs, atag, wtag, pre=None, last_half=False, prewait=None):
    for c in range(nch):
        g.wait_tag(atag(c)); g.wait_tag(wtag(c))
        if prewait: prewait(c)
        g.barrier()
        if pre: pre(c)
        steps = 1 if (last_half and c == nch - 1) else 2
        x0, x1, xo = aregs(c); w0, w1, wo_ = wregs(c)
        for j in range(steps):
            f = FR + 12 * j
            rd_x(f, x0 if j == 0 else x1, xo)
            rd_w(f + 4, w0, wo_ + 4096 * j)
            rd_w(f + 8, w1, wo_ + 4096 * j)
        for j in range(steps):
            f = FR + 12 * j
            mfma(A0, f + 4, f); mfma(A1, f + 8, f)

def phase2():
    g.comment("==== P2: x1 tile ====")
    A0, A1 = ACC, ACC + 4
    for r in range(ACC, ACC + 8): op('v_mov_b32', vr(r), 0)
    def prewait(c):
        if c == 6: g.wait_mark(MARKS['halo'])
    def pre(c):
        if c == 6: publish(2)
    small_gemm(A0, A1, 8, lambda c: (aX0h, aX1h, 8192 * c), lambda c: (aW0, aW1, 8192 * c),
               lambda c: f'h{c}', lambda c: f'w2_{c}', pre=pre, prewait=prewait)
    stamp()
    F = FR
    for u in range(2):
        for i in range(2):
            op('v_lshlrev_b32', vr(F + 4 * u + 2 * i), 16, vr(vXR + 2 * u + i))
            op('v_and_b32', vr(F + 4 * u + 2 * i + 1), 0xffff0000, vr(vXR + 2 * u + i))
    op('v_mul_f32', vr(10), vr(vM), vr(vRS1))
    for i in range(8):
        op('v_fma_f32', vr(F + 8 + i), vr(F + i), vr(vRS1), f'-{vr(10)}')
    for i in range(8):
        op('v_add_f32', vr(A0 + i), vr(A0 + i), vr(F + 8 + i))
    P = F + 16
    for i in range(4):
        op('v_cvt_pk_bf16_f32', vr(P + i), vr(A0 + 2 * i), vr(A0 + 2 * i + 1))
    for i in range(4):
        op('v_lshlrev_b32', vr(F + 8 + 2 * i), 16, vr(P + i))
        op('v_and_b32', vr(F + 8 + 2 * i + 1), 0xffff0000, vr(P + i))
    for i in range(8):
        op('v_add_f32', vr(vBASE + i), vr(F + i), vr(F + 8 + i))
    op('v_add_f32', vr(10), vr(F + 8), vr(F + 9))
    op('v_mul_f32', vr(11), vr(F + 8), vr(F + 8))
    op('v_fmac_f32', vr(11), vr(F + 9), vr(F + 9))
    for i in range(2, 8):
        op('v_add_f32', vr(10), vr(10), vr(F + 8 + i))
        op('v_fmac_f32', vr(11), vr(F + 8 + i), vr(F + 8 + i))
    op('v_permlane16_swap_b32', vr(P), vr(P + 2))
    op('v_permlane16_swap_b32', vr(P + 1), vr(P + 3))
    tile_store_offset(15)
    op('buffer_store_dwordx4', vr(P, 4), vr(15), sr(S_WS, 4), sr(sX1OFF), mods='offen sc1')
    g.tag_last_vm('x1st')
    cross_g_sum(10, 12)
    cross_g_sum(11, 12)
    op('s_lshl_b32', sr(sT0), sr(sCH), 9)
    op('s_lshl_b32', sr(sT1), sr(sRU), 7)
    op('s_add_u32', sr(sT0), sr(sT0), sr(sT1))
    op('s_add_u32', sr(sT0), sr(sT0), SC_X1)
    op('v_lshlrev_b32', vr(12), 3, vr(vL15))
    op('v_add_u32', vr(12), sr(sT0), vr(12))
    op('ds_write_b64', vr(12), vr(10, 2))
    g.wait(lgkm=0)
    g.barrier()
    lbl = newlab('x1s')
    wave0_begin(lbl)
    op('v_lshlrev_b32', vr(12), 3, vr(vLANE))
    op('v_add_u32', vr(13), SC_X1, vr(12))
    op('ds_read_b64', vr(4, 2), vr(13))
    op('ds_read_b64', vr(6, 2), vr(13), mods='offset:512')
    op('v_add_f32', vr(4), vr(4), vr(6))
    op('v_add_f32', vr(5), vr(5), vr(7))
    op('s_lshl_b32', sr(sT0), sr(sFI), 9)
    op('s_add_u32', sr(sT0), sr(sT0), WS['X1ST'])
    op('v_add_u32', vr(12), sr(sT0), vr(12))
    op('buffer_store_dwordx2', vr(4, 2), vr(12), sr(S_WS, 4), 0, mods='offen sc1')
    wave0_end(lbl)
    mk = g.mark()
    w3_load()
    g.wait_mark(mk)
    g.barrier()
    publish(3)
    stamp()

L_HALO = 98304
def attention():
    g.comment("==== attention ====")
    F = FR
    op('s_sub_u32', sr(sT4), sr(sFI), 8)
    poll(sT4, 1, 2)
    g.barrier()
    lbl = newlab('hl')
    op('s_cmp_lt_u32', sr(sW), 4)
    op('s_cbranch_scc0', lbl)
    g.div_begin()
    op('s_and_b32', sr(sT1), sr(sW), 1)
    op('s_lshl_b32', sr(sT1), sr(sT1), 2)
    op('v_add_u32', vr(5), sr(sT1), vr(vG))
    op('v_and_b32', vr(6), 7, vr(vLANE))
    op('v_xor_b32', vr(5), vr(5), vr(6))
    op('v_lshlrev_b32', vr(5), 4, vr(5))
    op('v_lshrrev_b32', vr(4), 3, vr(vLANE))
    op('v_lshl_add_u32', vr(5), vr(4), 7, vr(5))
    op('s_sub_u32', sr(sT0), sr(sFI), 8)
    op('s_lshl_b32', sr(sT0), sr(sT0), 12)
    op('s_add_u32', sr(sT0), sr(sT0), sr(sT5))
    op('s_add_u32', sr(sT0), sr(sT0), WS['HALO'])
    op('s_cmp_eq_u32', sr(sRB), 0)
    op('s_cselect_b32', sr(sT0), 0x7f000000, sr(sT0))
    op('v_add_u32', vr(5), sr(sT0), vr(5))
    set_m0(L_HALO, 1024)
    op('buffer_load_dwordx4', vr(5), sr(S_WS, 4), 0, mods='offen sc1 lds')
    g.force_wait('vmcnt(0)')
    g.div_end()
    g.label(lbl)
    u_s, hp_s = sT2, sT3
    op('s_lshr_b32', sr(u_s), sr(sW), 1)
    op('s_and_b32', sr(hp_s), sr(sW), 1)
    B0, B1 = F + 0, F + 4
    op('v_mov_b32', vr(10), 0xff800000)
    op('v_mov_b32', vr(11), 0)
    op('s_or_b32', sr(sT0), sr(sRB), sr(u_s))
    op('s_cmp_eq_u32', sr(sT0), 0)
    op('s_cselect_b32', sr(sT0), 64, 0)
    op('v_add_u32', vr(9), sr(sT0), vr(vL15))
    op('v_add_u32', vr(9), 2, vr(9))
    for r in range(4):
        op('v_lshl_add_u32', vr(4), vr(vG), 2, r)
        op('v_xor_b32', vr(5), vr(4), vr(vL15))
        op('v_and_b32', vr(5), 1, vr(5))
        op('v_cmp_eq_u32', 's[88:89]', 0, vr(5))
        op('v_cmp_ge_u32', 'vcc', vr(4), vr(9))
        op('s_and_b64', 'vcc', 'vcc', 's[88:89]')
        op('v_cndmask_b32', vr(B0 + r), vr(10), vr(11), 'vcc')
        op('v_cmp_le_u32', 'vcc', vr(4), vr(vL15))
        op('s_and_b64', 'vcc', 'vcc', 's[88:89]')
        op('v_cndmask_b32', vr(B1 + r), vr(10), vr(11), 'vcc')
    op('v_lshrrev_b32', vr(4), 1, vr(vG))
    op('s_lshl_b32', sr(sT0), sr(hp_s), 2)
    op('v_add_u32', vr(4), sr(sT0), vr(4))
    op('v_lshrrev_b32', vr(5), 1, vr(vL15))
    op('v_and_b32', vr(6), 1, vr(vG))
    op('v_lshlrev_b32', vr(6), 3, vr(6))
    op('v_lshl_add_u32', vr(6), vr(vL15), 7, vr(6))
    aR = [F + 8, F + 9]
    for i in range(2):
        op('v_add_u32', vr(7), 2 * i, vr(4))
        op('v_xor_b32', vr(7), vr(7), vr(5))
        op('v_lshl_add_u32', vr(aR[i]), vr(7), 4, vr(6))
    op('v_lshrrev_b32', vr(4), 2, vr(vL15))
    op('v_lshl_add_u32', vr(5), vr(vG), 2, vr(4))
    op('v_lshrrev_b32', vr(7), 1, vr(5))
    op('v_and_b32', vr(8), 3, vr(vLANE))
    op('v_lshrrev_b32', vr(9), 1, vr(8))
    op('s_lshl_b32', sr(sT0), sr(hp_s), 2)
    op('v_add_u32', vr(9), sr(sT0), vr(9))
    op('v_and_b32', vr(8), 1, vr(8))
    op('v_lshlrev_b32', vr(8), 3, vr(8))
    op('v_lshl_add_u32', vr(8), vr(5), 7, vr(8))
    aT = [F + 10, F + 11]
    for i in range(2):
        op('v_add_u32', vr(4), 2 * i, vr(9))
        op('v_xor_b32', vr(4), vr(4), vr(7))
        op('v_lshl_add_u32', vr(aT[i]), vr(4), 4, vr(8))
    sCUR, sPK, sPV = sT0, sT1, sT4
    op('s_lshl_b32', sr(sCUR), sr(u_s), 11)
    op('s_add_u32', sr(sCUR), sr(sCUR), L_R)
    op('s_add_u32', sr(sPK), sr(sCUR), 8192 - 2048)
    op('s_add_u32', sr(sPV), sr(sCUR), 16384 - 2048)
    op('s_cmp_eq_u32', sr(u_s), 0)
    op('s_cselect_b32', sr(sPK), L_HALO, sr(sPK))
    op('s_cselect_b32', sr(sPV), L_HALO + 2048, sr(sPV))
    g.barrier()
    QF = [F + 12, F + 16]; K0F = [F + 20, F + 24]; K1F = [F + 28, F + 32]; VF = [F + 36, F + 40]
    for i in range(2):
        for q in (QF[i], K0F[i], K1F[i]):
            op('v_mov_b32', vr(q + 2), 0); op('v_mov_b32', vr(q + 3), 0)
    for i in range(2):
        op('v_add_u32', vr(4), sr(sCUR), vr(aR[i]))
        op('ds_read_b64', vr(QF[i], 2), vr(4))
        op('ds_read_b64', vr(K1F[i], 2), vr(4), mods='offset:8192')
        op('v_add_u32', vr(5), sr(sPK), vr(aR[i]))
        op('ds_read_b64', vr(K0F[i], 2), vr(5))
        op('v_add_u32', vr(6), sr(sPV), vr(aT[i]))
        op('ds_read_b64_tr_b16', vr(VF[i], 2), vr(6))
        op('v_add_u32', vr(7), sr(sCUR), vr(aT[i]))
        op('ds_read_b64_tr_b16', vr(VF[i] + 2, 2), vr(7), mods='offset:16384')
    S0 = [ACC, ACC + 8]; S1 = [ACC + 4, ACC + 12]; OO = [ACC + 16, ACC + 20]
    for i in range(2):
        mfma(S0[i], K0F[i], QF[i], '0'); mfma(S1[i], K1F[i], QF[i], '0')
    op('s_mov_b32', sr(sT2), f2u(0.25 * 1.4426950408889634))
    PK = [F + 44, F + 48]
    for i in range(2):
        t = [S0[i] + r for r in range(4)] + [S1[i] + r for r in range(4)]
        b = [B0 + r for r in range(4)] + [B1 + r for r in range(4)]
        for a, bb in zip(t, b): op('v_fma_f32', vr(a), vr(a), sr(sT2), vr(bb))
        op('v_max3_f32', vr(4), vr(t[0]), vr(t[1]), vr(t[2]))
        op('v_max3_f32', vr(5), vr(t[3]), vr(t[4]), vr(t[5]))
        op('v_max3_f32', vr(4), vr(4), vr(t[6]), vr(t[7]))
        op('v_max_f32', vr(4), vr(4), vr(5))
        op('v_mov_b32', vr(5), vr(4))
        op('v_permlane16_swap_b32', vr(4), vr(5))
        op('v_max_f32', vr(4), vr(4), vr(5))
        op('v_mov_b32', vr(5), vr(4))
        op('v_permlane32_swap_b32', vr(4), vr(5))
        op('v_max_f32', vr(4), vr(4), vr(5))
        for a in t: op('v_sub_f32', vr(a), vr(a), vr(4))
        for a in t: op('v_exp_f32', vr(a), vr(a))
        op('v_add_f32', vr(6), vr(t[0]), vr(t[1]))
        for a in t[2:]: op('v_add_f32', vr(6), vr(6), vr(a))
        for k in range(4): op('v_cvt_pk_bf16_f32', vr(PK[i] + k), vr(t[2 * k]), vr(t[2 * k + 1]))
        mfma(OO[i], VF[i], PK[i], '0')
        cross_g_sum(6, 7)
        op('v_rcp_f32', vr(8 + i), vr(6))
    P = F + 52
    for i in range(2):
        for r in range(4): op('v_mul_f32', vr(OO[i] + r), vr(8 + i), vr(OO[i] + r))
        op('v_cvt_pk_bf16_f32', vr(P + 2 * i), vr(OO[i]), vr(OO[i] + 1))
        op('v_cvt_pk_bf16_f32', vr(P + 2 * i + 1), vr(OO[i] + 2), vr(OO[i] + 3))
    op('v_permlane16_swap_b32', vr(P), vr(P + 2))
    op('v_permlane16_swap_b32', vr(P + 1), vr(P + 3))
    op('s_lshr_b32', sr(sT0), sr(sW), 1)
    op('s_lshl_b32', sr(sT0), sr(sT0), 4)
    op('s_lshl_b32', sr(sT1), sr(sRB), 6)
    op('s_add_u32', sr(sT0), sr(sT0), sr(sT1))
    op('v_add_u32', vr(4), sr(sT0), vr(vL15))
    op('v_lshlrev_b32', vr(4), 10, vr(4))
    op('v_and_b32', vr(5), 1, vr(vG))
    op('v_lshlrev_b32', vr(5), 5, vr(5))
    op('v_lshrrev_b32', vr(6), 1, vr(vG))
    op('v_lshl_add_u32', vr(5), vr(6), 4, vr(5))
    op('s_and_b32', sr(sT1), sr(sW), 1)
    op('s_lshl_b32', sr(sT1), sr(sT1), 6)
    op('s_lshl_b32', sr(sT0), sr(sCG), 7)
    op('s_add_u32', sr(sT0), sr(sT0), sr(sT1))
    op('v_add3_u32', vr(4), vr(4), vr(5), sr(sT0))
    op('buffer_store_dwordx4', vr(P, 4), vr(4), sr(S_WS, 4), sr(sOOFF), mods='offen sc1')
    g.tag_last_vm('ost')

sRB128, sC16, sW3072, sW2048 = 90, 91, 92, 93
sX1OFF, sOOFF, sH2OFF = 94, 95, 87
vW3 = [200, 201, 202]
vKL = [203, 204, 205]
vPP = [206, 207, 208]
vX1 = [209, 210]
aX3 = [211, 212]
aW3 = [[213, 214], [215, 216], [217, 218]]
vH2 = 219
L_X1 = 98304
def p3_setup():
    op('s_lshr_b32', sr(sRB128), sr(sRB), 1)
    op('s_and_b32', sr(sT0), sr(sRB), 1)
    op('s_lshl_b32', sr(sT0), sr(sT0), 3)
    op('s_add_u32', sr(sC16), sr(sT0), sr(sCG))
    op('s_mul_i32', sr(sW3072), sr(sW), 3072)
    op('s_lshl_b32', sr(sW2048), sr(sW), 11)
    op('s_mov_b32', sr(sX1OFF), WS['X1'])
    op('s_mov_b32', sr(sOOFF), WS['O'])
    op('s_mov_b32', sr(sH2OFF), WS['H2A'])
    op('s_mul_i32', sr(sT1), sr(sC16), 192)
    for n in range(3):
        op('v_add_u32', vr(4), 64 * n, vr(vLANE))
        op('v_mul_u32_u24', vr(5), 171, vr(4))
        op('v_lshrrev_b32', vr(vKL[n]), 11, vr(5))
        op('v_mul_u32_u24', vr(5), 12, vr(vKL[n]))
        op('v_sub_u32', vr(vPP[n]), vr(4), vr(5))
        op('v_lshrrev_b32', vr(5), 1, vr(vPP[n]))
        op('v_lshrrev_b32', vr(6), 3, vr(vKL[n]))
        op('v_xor_b32', vr(5), vr(5), vr(6))
        op('v_lshlrev_b32', vr(5), 5, vr(5))
        op('v_and_b32', vr(6), 1, vr(vPP[n]))
        op('v_lshl_add_u32', vr(5), vr(6), 4, vr(5))
        op('v_mul_u32_u24', vr(6), 2752, vr(vKL[n]))
        op('v_add3_u32', vr(vW3[n]), vr(5), vr(6), sr(sT1))
    op('s_lshl_b32', sr(sT0), sr(sRB128), 7)
    op('s_lshl_b32', sr(sT1), sr(sW), 4)
    op('s_add_u32', sr(sT0), sr(sT0), sr(sT1))
    op('v_lshrrev_b32', vr(4), 3, vr(vLANE))
    op('v_add_u32', vr(4), sr(sT0), vr(4))
    op('v_and_b32', vr(6), 7, vr(vLANE))
    for j in range(2):
        op('v_add_u32', vr(5), 4 * j, vr(vG))
        op('v_xor_b32', vr(5), vr(5), vr(6))
        op('v_lshlrev_b32', vr(5), 4, vr(5))
        op('v_add_u32', vr(7), 8 * j, vr(4))
        op('v_lshl_add_u32', vr(vX1[j]), vr(7), 10, vr(5))
    op('s_lshl_b32', sr(sT0), sr(sRU), 12)
    op('s_add_u32', sr(sT0), sr(sT0), L_X1)
    op('v_add_u32', vr(aX3[0]), sr(sT0), vr(51))
    op('v_xor_b32', vr(aX3[1]), 64, vr(aX3[0]))
    op('v_lshrrev_b32', vr(4), 2, vr(vL15))
    op('v_lshl_add_u32', vr(4), vr(vG), 3, vr(4))
    op('v_mul_u32_u24', vr(4), 192, vr(4))
    op('v_and_b32', vr(5), 3, vr(vLANE))
    op('v_lshl_add_u32', vr(4), vr(5), 3, vr(4))
    op('v_and_b32', vr(5), 1, vr(vG))
    op('s_mul_i32', sr(sT0), sr(sCH), 3)
    for u in range(3):
        op('s_add_u32', sr(sT1), sr(sT0), u)
        op('v_xor_b32', vr(6), sr(sT1), vr(5))
        op('v_lshl_add_u32', vr(aW3[u][0]), vr(6), 5, vr(4))
        op('v_add_u32', vr(aW3[u][1]), 49152, vr(aW3[u][0]))
    op('s_lshl_b32', sr(sT2), sr(sRB), 6)
    op('s_lshl_b32', sr(sT3), sr(sW), 3)
    op('s_add_u32', sr(sT2), sr(sT2), sr(sT3))
    op('v_lshrrev_b32', vr(4), 3, vr(vLANE))
    op('v_add_u32', vr(4), sr(sT2), vr(4))
    op('v_mul_u32_u24', vr(vH2), H2A_PITCH, vr(4))
    op('v_and_b32', vr(5), 0x7f, vr(vXA))
    op('v_add_u32', vr(vH2), vr(vH2), vr(5))

def w3_load():
    for i in range(4):
        op('s_add_u32', sr(sT0), sr(sW), 8 * i)
        op('s_mul_i32', sr(sT2), sr(sT0), 16 * 2752)
        for n in range(3):
            op('s_add_u32', 'm0', sr(sW3072), 24576 * i + 1024 * n)
            op('buffer_load_dwordx4', vr(vW3[n]), sr(S_W3, 4), sr(sT2), mods='offen lds')
            g.tag_last_vm('w3')

def rd_w3(dst, u, ks):
    reg = aW3[u][0] if ks < 8 else aW3[u][1]
    off = (ks % 8) * 6144
    op('ds_read_b64_tr_b16', vr(dst, 2), vr(reg), mods=f'offset:{off}')
    op('ds_read_b64_tr_b16', vr(dst + 2, 2), vr(reg), mods=f'offset:{off + 768}')

def x1_stage_load(s):
    op('s_add_u32', sr(sT2), sr(sX1OFF), 128 * s)
    for j in range(2):
        op('s_add_u32', 'm0', sr(sW2048), L_X1 + 16384 * (s % 4) + 1024 * j)
        op('buffer_load_dwordx4', vr(vX1[j]), sr(S_WS, 4), sr(sT2), mods='offen sc1 lds')
        g.tag_last_vm(f'x1_{s}')

def phase3():
    g.comment("==== P3: h2a tile ====")
    skip = newlab('p3skip')
    AC = [[ACC + 4 * (3 * a + u) for u in range(3)] for a in range(2)]
    CS = [ACC + 24 + 4 * u for u in range(3)]
    for r in range(ACC, ACC + 36): op('v_mov_b32', vr(r), 0)
    g.wait_tag('w3'); g.wait_tag('ost')
    g.barrier()
    publish(4)
    op('s_cmp_eq_u32', sr(sC16), 15)
    op('s_cbranch_scc1', skip)
    for ks in range(16):
        f = FR + 12 * (ks & 1)
        for u in range(3): rd_w3(f + 4 * u, u, ks)
        for u in range(3): mfma(CS[u], f + 4 * u, vONES)
    g.wait(lgkm=0)
    stamp()
    op('s_lshl_b32', sr(sT4), sr(sRB128), 4)
    poll(sT4, 16, 3)
    g.barrier()
    ST = 220
    op('s_lshr_b32', sr(sT0), sr(sRU), 1)
    op('s_lshl_b32', sr(sT1), sr(sRB128), 1)
    op('s_add_u32', sr(sT0), sr(sT0), sr(sT1))
    op('s_lshl_b32', sr(sT0), sr(sT0), 12)
    op('s_and_b32', sr(sT1), sr(sRU), 1)
    op('s_lshl_b32', sr(sT1), sr(sT1), 8)
    op('s_add_u32', sr(sT0), sr(sT0), sr(sT1))
    op('s_add_u32', sr(sT0), sr(sT0), WS['X1ST'])
    op('v_lshlrev_b32', vr(4), 10, vr(vG))
    op('v_lshl_add_u32', vr(4), vr(vL15), 3, vr(4))
    op('v_add_u32', vr(4), sr(sT0), vr(4))
    for a in range(2):
        for i in range(2):
            op('buffer_load_dwordx2', vr(ST + 4 * a + 2 * i, 2), vr(4), sr(S_WS, 4), 0, mods=f'offen offset:{128 * a + 512 * i} sc1')
    for s in range(4): x1_stage_load(s)
    stamp()
    for s in range(8):
        g.wait_tag(f'x1_{s}')
        g.barrier()
        if s >= 1 and s + 3 < 8: x1_stage_load(s + 3)
        for j in range(2):
            ks = 2 * s + j
            f = FR + 20 * j
            rd_x(f, aX3[j], 16384 * (s % 4))
            rd_w3(f + 8, 0, ks)
            rd_x(f + 4, aX3[j], 16384 * (s % 4) + 2048)
            rd_w3(f + 12, 1, ks)
            rd_w3(f + 16, 2, ks)
        for j in range(2):
            f = FR + 20 * j
            for u in range(3):
                for a in range(2):
                    mfma(AC[a][u], f + 8 + 4 * u, f + 4 * a)
    g.wait(lgkm=0)
    stamp()
    g.barrier()
    F = FR
    MS = []
    for a in range(2):
        op('v_add_f32', vr(ST + 4 * a), vr(ST + 4 * a), vr(ST + 4 * a + 2))
        op('v_add_f32', vr(ST + 4 * a + 1), vr(ST + 4 * a + 1), vr(ST + 4 * a + 3))
        cross_g_sum(ST + 4 * a, 4)
        cross_g_sum(ST + 4 * a + 1, 4)
        m_, q_ = ST + 4 * a, ST + 4 * a + 1
        op('v_mul_f32', vr(m_), f2u(1.0 / 512), vr(m_))
        op('v_mul_f32', vr(q_), f2u(1.0 / 512), vr(q_))
        op('v_fma_f32', vr(q_), f'-{vr(m_)}', vr(m_), vr(q_))
        op('v_max_f32', vr(q_), 0, vr(q_))
        op('v_add_f32', vr(q_), f2u(1e-5), vr(q_))
        op('v_rsq_f32', vr(q_), vr(q_))
    op('s_lshl_b32', sr(sT0), sr(sRU), 5)
    op('v_add_u32', vr(4), sr(sT0), vr(vL15))
    op('v_mul_u32_u24', vr(4), 192, vr(4))
    op('v_lshl_add_u32', vr(4), vr(vG), 3, vr(4))
    op('s_mul_i32', sr(sT0), sr(sCH), 96)
    op('v_add_u32', vr(15), sr(sT0), vr(4))
    for a in range(2):
        m_, q_ = ST + 4 * a, ST + 4 * a + 1
        regs = [AC[a][u] + r for u in range(3) for r in range(4)]
        for u in range(3):
            for r in range(4):
                op('v_fma_f32', vr(AC[a][u] + r), f'-{vr(m_)}', vr(CS[u] + r), vr(AC[a][u] + r))
        for x in regs: op('v_mul_f32', vr(x), vr(q_), vr(x))
        gelu_list(regs, [F + i for i in range(12)])
        for u in range(3):
            P = F + 12 + 2 * u
            op('v_cvt_pk_bf16_f32', vr(P), vr(AC[a][u]), vr(AC[a][u] + 1))
            op('v_cvt_pk_bf16_f32', vr(P + 1), vr(AC[a][u] + 2), vr(AC[a][u] + 3))
            op('ds_write_b64', vr(15), vr(P, 2), mods=f'offset:{16 * 192 * a + 32 * u}')
    g.wait(lgkm=0)
    g.barrier()
    op('v_lshlrev_b32', vr(4), 4, vr(vLANE))
    op('v_add_u32', vr(4), sr(sW3072), vr(4))
    for n in range(3):
        op('ds_read_b128', vr(F + 4 * n, 4), vr(4), mods=f'offset:{1024 * n}')
    op('s_lshl_b32', sr(sT0), sr(sRB128), 7)
    op('s_lshl_b32', sr(sT1), sr(sW), 4)
    op('s_add_u32', sr(sT0), sr(sT0), sr(sT1))
    op('s_mul_i32', sr(sT0), sr(sT0), H2A_PITCH)
    op('s_mul_i32', sr(sT1), sr(sC16), 192)
    op('s_add_u32', sr(sT0), sr(sT0), sr(sT1))
    op('s_add_u32', sr(sT0), sr(sT0), WS['H2A'])
    op('s_cmp_eq_u32', sr(sC16), 14)
    op('s_cselect_b32', sr(sT1), 4, 12)
    for n in range(3):
        op('v_mul_u32_u24', vr(5), H2A_PITCH, vr(vKL[n]))
        op('v_lshl_add_u32', vr(5), vr(vPP[n]), 4, vr(5))
        op('v_add_u32', vr(5), sr(sT0), vr(5))
        op('v_cmp_gt_u32', 'vcc', sr(sT1), vr(vPP[n]))
        op('v_mov_b32', vr(6), 0x7f000000)
        op('v_cndmask_b32', vr(5), vr(6), vr(5), 'vcc')
        op('buffer_store_dwordx4', vr(F + 4 * n, 4), vr(5), sr(S_WS, 4), 0, mods='offen sc1')
        g.tag_last_vm('h2st')
    jmp = newlab('p3j')
    op('s_branch', jmp)
    g.label(skip)
    p3_idle()
    g.label(jmp)
    mk = g.mark()
    wo_loads()
    g.wait_mark(mk)
    g.barrier()
    publish(5)
    stamp()

_p3_barriers = 1 + 8 + 1 + 1
def p3_idle():
    for i in range(1 + 8 + 1 + 1): g_raw_barrier()
def g_raw_barrier():
    g.raw("  s_barrier")

L_WO, L_O = 32768, 98304
def wo_loads(track=True):
    op('s_lshl_b32', sr(sT4), sr(sRB), 3)
    poll(sT4, 8, 4)
    g.barrier()
    for c in range(8):
        op('s_mov_b32', sr(sT2), 65536 * c)
        dma1(vB1, S_WO, sr(sT2), L_WO + 8192 * c, f'wo{c}')
        op('s_add_u32', sr(sT2), sr(sOOFF), 128 * c)
        set_m0(L_O + 8192 * c, 1024)
        op('buffer_load_dwordx4', vr(vXA), sr(S_WS, 4), sr(sT2), mods='offen sc1 lds')
        g.tag_last_vm(f'o{c}')

aXr = {0: (42, 43), 1: (47, 48), 2: (221 + 8, 221 + 9)}
aWr = {0: (44, 45), 1: (49, 50), 2: (221 + 10, 221 + 11)}
def lds_regs(addr):
    reg = addr >> 16
    return reg, addr & 0xffff

def phase4():
    g.comment("==== wo filler + P4 ====")
    A0, A1 = vBASE, vBASE + 4
    for lo, hi in ((42, aXr[2][0]), (43, aXr[2][1]), (44, aWr[2][0]), (45, aWr[2][1])):
        op('v_add_u32', vr(hi), 131072, vr(lo))
    def areg(addr):
        r, o = lds_regs(addr); return aXr[r][0], aXr[r][1], o
    def wreg(addr):
        r, o = lds_regs(addr); return aWr[r][0], aWr[r][1], o
    NCH = 22
    free = [3, 0, 1, 2]
    slotB = {}; slotA = {}
    nextB = [0]
    def loadB(slot):
        c = nextB[0]; nextB[0] += 1
        slotB[c] = slot
        op('s_mov_b32', sr(sT2), 65536 * c)
        dma1(vB1, S_W4, sr(sT2), 8192 * slot, f'w4_{c}')
    def loadA(c, slot):
        slotA[c] = slot
        op('s_add_u32', sr(sT2), sr(sH2OFF), 128 * c)
        set_m0(8192 * slot, 1024)
        op('buffer_load_dwordx4', vr(vH2), sr(S_WS, 4), sr(sT2), mods='offen sc1 lds')
        g.tag_last_vm(f'h2_{c}')
    for s_ in free: loadB(s_)
    freed = []
    def pre(c):
        if c >= 1:
            freed.extend([4 + c - 1, 12 + c - 1])
            if c <= 5:
                loadB(freed.pop(0)); loadB(freed.pop(0))
    small_gemm(A0, A1, 8, lambda c: areg(L_O + 8192 * c), lambda c: wreg(L_WO + 8192 * c),
               lambda c: f'o{c}', lambda c: f'wo{c}', pre=pre)
    g.wait(lgkm=0)
    stamp()
    op('s_lshl_b32', sr(sT4), sr(sRB128), 4)
    poll(sT4, 16, 5)
    g.barrier()
    freed.extend([11, 19])
    nA = 0
    while freed and nA < 6:
        loadA(nA, freed.pop(0)); nA += 1
    nAq = [nA]
    stamp()
    for c in range(NCH):
        g.wait_tag(f'h2_{c}'); g.wait_tag(f'w4_{c}')
        g.barrier()
        if c >= 1:
            freed.extend([slotA[c - 1], slotB[c - 1]])
        while freed and (nAq[0] < NCH or nextB[0] < NCH):
            if nAq[0] < NCH and (nAq[0] <= nextB[0] or nextB[0] >= NCH):
                loadA(nAq[0], freed.pop(0)); nAq[0] += 1
            else:
                loadB(freed.pop(0))
        steps = 1 if c == NCH - 1 else 2
        x0, x1_, xo = areg(8192 * slotA[c]); w0, w1_, wo_ = wreg(8192 * slotB[c])
        for j in range(steps):
            f = FR + 12 * j
            rd_x(f, x0 if j == 0 else x1_, xo)
            rd_w(f + 4, w0, wo_ + 4096 * j)
            rd_w(f + 8, w1_, wo_ + 4096 * j)
        for j in range(steps):
            f = FR + 12 * j
            mfma(A0, f + 4, f); mfma(A1, f + 8, f)
    stamp()
    P = FR
    for i in range(4):
        op('v_cvt_pk_bf16_f32', vr(P + i), vr(A0 + 2 * i), vr(A0 + 2 * i + 1))
    op('v_permlane16_swap_b32', vr(P), vr(P + 2))
    op('v_permlane16_swap_b32', vr(P + 1), vr(P + 3))
    tile_store_offset(15)
    op('buffer_store_dwordx4', vr(P, 4), vr(15), sr(S_OUT, 4), 0, mods='offen')
    lbl = newlab('ep')
    op('s_or_b32', sr(sT0), sr(sFI), sr(sW))
    op('s_cmp_eq_u32', sr(sT0), 0)
    op('s_cbranch_scc0', lbl)
    g.div_begin()
    op('v_lshlrev_b32', vr(12), 9, vr(vLANE))
    op('v_add_u32', vr(63), WS['FLAGS'], vr(12))
    op('s_add_u32', sr(sT0), sr(sT), 1)
    op('s_mov_b32', sr(sT1), 0)
    loop = newlab('el'); done = newlab('ed')
    g.label(loop)
    for i in range(4):
        op('buffer_load_dword', vr(4 + i), vr(63), sr(S_WS, 4), 0, mods=f'offen offset:{128 * i} sc1')
    g.force_wait('vmcnt(0)'); g.vm = []
    for i in range(4): op('v_subrev_u32', vr(4 + i), sr(sT0), vr(4 + i))
    op('v_max_u32', vr(4), vr(4), vr(5)); op('v_max_u32', vr(6), vr(6), vr(7)); op('v_max_u32', vr(4), vr(4), vr(6))
    op('v_cmp_ge_u32', 'vcc', 6, vr(4))
    op('s_cmp_eq_u64', 'vcc', 'exec')
    op('s_cbranch_scc1', done)
    op('s_sleep', 1)
    op('s_add_u32', sr(sT1), sr(sT1), 1)
    op('s_cmp_lt_u32', sr(sT1), POLL_LIMIT)
    op('s_cbranch_scc1', loop)
    g.label(done)
    op('v_mov_b32', vr(4), sr(sT))
    op('v_mov_b32', vr(5), WS['EPOCH'])
    op('s_mov_b64', 'exec', 1)
    op('buffer_store_dword', vr(4), vr(5), sr(S_WS, 4), 0, mods='offen sc1')
    g.div_end()
    g.label(lbl)

def epilogue_end():
    g.waitall()
    g.label('L_END')
    op('s_endpgm')

def build():
    prologue()
    stamp()
    p3_setup()
    phase1a()
    stamp()
    if OPT['upto'] != 'p1a':
        phase1b()
        phase2()
        attention()
        stamp()
        phase3()
        phase4()
    stamp()
    epilogue_end()
    hdr = f"; @launch grid=(256,1,1) block=(512,1,1) lds=163840\n"
    s = hdr + '.amdgcn_target "amdgcn-amd-amdhsa--gfx950"\n.text\n'
    s += f".globl {NAME}_kernel\n.p2align 8\n.type {NAME}_kernel,@function\n{NAME}_kernel:\n"
    s += g.text()
    s += f""".section .rodata,"a"
.p2align 6
.amdhsa_kernel {NAME}_kernel
  .amdhsa_next_free_vgpr 256
  .amdhsa_next_free_sgpr 96
  .amdhsa_accum_offset 256
  .amdhsa_group_segment_fixed_size 0
  .amdhsa_kernarg_size 88
  .amdhsa_user_sgpr_count 2
  .amdhsa_user_sgpr_kernarg_segment_ptr 1
  .amdhsa_system_sgpr_workgroup_id_x 1
.end_amdhsa_kernel
"""
    return s

if __name__ == "__main__":
    out = sys.argv[1] if len(sys.argv) > 1 else "k.s"
    open(out, "w").write(build())
    print("wrote", out, "instructions:", g.nins)
```

```python
import sys, os
sys.path.insert(0, os.path.dirname(os.path.abspath(__file__)))
from asmlib import *

NAME = "parallel_sum__sliding_local_dilated__mixer_s_mlp__prompt"
WS = dict(H=0x000000, O=0x200000, X1=0x400000, H2A=0x600000, X1ST=0xC00000, HALO=0xC40000,
          FLAGS=0xE00000, EPOCH=0xE10000, STAMP=0xF00000)
WS_SIZE = 0x1000000
H2A_PITCH = 2816
OPT = dict(upto=os.environ.get("UPTO", "all"), stamps=int(os.environ.get("GSTAMPS", "0")))

S_X, S_WQKV, S_W1, S_W2, S_WO, S_W3, S_W4, S_OUT, S_WS, S_H = 4, 8, 12, 16, 20, 24, 28, 32, 36, 40
sRB, sCG, sW, sT, sFI, sROT = 46, 47, 48, 49, 50, 51
sRU, sCH = 44, 45
sT0, sT1, sT2, sT3, sT4, sT5 = 74, 75, 76, 77, 78, 79
sMSKA, sMSKB = 80, 81
sSTAMP = 84
sSOFF = 86

L_X = 0
L_W = 65536
L_R = 131072
L_SCR = 155648
RING = [L_R, L_W, L_W + 24576]
SC_RS = L_SCR
SC_SQ = L_SCR + 512
SC_CS = L_SCR + 1024
SC_CQ = L_SCR + 2048
SC_X1 = L_SCR + 4096

vTID, vLANE, vL15, vG = 0, 1, 2, 3
vT = list(range(4, 16))
vXA, vB1, vB3 = 16, 17, 18
vH = [19, 20, 21, 22]
vM, vRS1 = 23, 24
vXR = 25
vXR = 26
vONES = 30
vBASE = 34
aX0, aX1 = 42, 43
aW0, aW1, aW2 = 44, 45, 46
aX0h, aX1h = 47, 48
aW0h, aW1h = 49, 50
FR = 64
ACC = 128

g = Gen()
def op(mn, *a, mods=''): return g.op(mn, *a, mods=mods)

_stamp_n = [0]
def stamp():
    if not OPT['stamps']: return
    n = _stamp_n[0]; _stamp_n[0] += 1
    op('s_memrealtime', sr(sSTAMP, 2))
    g.wait(lgkm=0)
    op('v_mov_b32', vr(62), sr(sSTAMP))
    if OPT['stamps'] == 1:
        op('buffer_store_dword', vr(62), vr(61), sr(S_WS, 4), 0, mods=f'offen offset:{4*n}')
    else:
        if n >= 16:
            return
        op('buffer_store_dword', vr(62), vr(61), 's[96:99]', 0, mods=f'offen offset:{4*n}')
    g.vm.pop(); g.vm_total -= 1

def srd(dst, lo, hi, size):
    op('s_mov_b32', sr(dst), sr(lo))
    op('s_and_b32', sr(dst + 1), sr(hi), 0xffff)
    op('s_mov_b32', sr(dst + 2), size)
    op('s_mov_b32', sr(dst + 3), 0x20000)

def dma(voff, srdreg, soff, lds, tag=None):
    raise NotImplementedError

def set_m0(base_imm, wave_mul):
    if wave_mul == 1024:
        op('s_add_u32', 'm0', sr(sT5), base_imm)
    else:
        raise NotImplementedError

def dma1(voff, srdreg, soff, ldsbase, tag):
    set_m0(ldsbase, 1024)
    op('buffer_load_dwordx4', vr(voff), sr(srdreg, 4), soff, mods='offen lds')
    g.tag_last_vm(tag)

def mfma(d, a, b, c=None):
    c = vr(d, 4) if c is None else c
    op('v_mfma_f32_16x16x32_bf16', vr(d, 4), vr(a, 4), vr(b, 4), c)

def guard(cond_mask, bit, label, body):
    op('s_bitcmp1_b32', sr(cond_mask), bit)
    op('s_cbranch_scc0', label)
    g.guard_begin()
    body()
    g.guard_end()
    g.label(label)

def prologue():
    op('s_cmp_ge_u32', 's2', 256)
    op('s_cbranch_scc1', 'L_END')
    op('s_load_dwordx16', 's[52:67]', 's[0:1]', 0)
    op('s_load_dwordx4', 's[68:71]', 's[0:1]', 64)
    op('s_load_dwordx2', 's[72:73]', 's[0:1]', 80)
    op('v_and_b32', vr(vLANE), 63, vr(vTID))
    op('v_lshrrev_b32', vr(4), 6, vr(vTID))
    op('v_and_b32', vr(vL15), 15, vr(vTID))
    op('v_readfirstlane_b32', sr(sW), vr(4))
    op('v_lshrrev_b32', vr(vG), 4, vr(vLANE))
    op('s_and_b32', sr(sT0), 's2', 7)
    op('s_lshl_b32', sr(sT0), sr(sT0), 2)
    op('s_lshr_b32', sr(sT1), 's2', 6)
    op('s_add_u32', sr(sRB), sr(sT0), sr(sT1))
    op('s_lshr_b32', sr(sT0), 's2', 3)
    op('s_and_b32', sr(sCG), sr(sT0), 7)
    op('s_lshl_b32', sr(sFI), sr(sRB), 3)
    op('s_add_u32', sr(sFI), sr(sFI), sr(sCG))
    op('s_and_b32', sr(sRU), sr(sW), 3)
    op('s_lshr_b32', sr(sCH), sr(sW), 2)
    op('s_lshl_b32', sr(sT5), sr(sW), 10)
    op('v_lshrrev_b32', vr(4), 3, vr(vLANE))
    op('s_and_b32', sr(sT0), sr(sW), 1)
    op('s_lshl_b32', sr(sT1), sr(sT0), 2)
    op('v_add_u32', vr(5), sr(sT1), vr(vG))
    op('v_and_b32', vr(6), 7, vr(vLANE))
    op('v_xor_b32', vr(5), vr(5), vr(6))
    op('v_lshlrev_b32', vr(5), 4, vr(5))
    op('s_lshl_b32', sr(sT2), sr(sRB), 6)
    op('s_lshl_b32', sr(sT3), sr(sW), 3)
    op('s_add_u32', sr(sT2), sr(sT2), sr(sT3))
    op('v_add_u32', vr(7), sr(sT2), vr(4))
    op('v_lshlrev_b32', vr(vXA), 10, vr(7))
    op('v_add_u32', vr(vXA), vr(vXA), vr(5))
    op('v_and_b32', vr(8), 1, vr(vG))
    op('s_lshl_b32', sr(sT1), sr(sT0), 1)
    op('v_or_b32', vr(8), sr(sT1), vr(8))
    op('v_lshrrev_b32', vr(9), 1, vr(6))
    op('v_xor_b32', vr(8), vr(8), vr(9))
    op('v_lshlrev_b32', vr(8), 5, vr(8))
    op('v_and_b32', vr(9), 1, vr(vLANE))
    op('v_lshlrev_b32', vr(9), 4, vr(9))
    op('v_add_u32', vr(8), vr(8), vr(9))
    op('s_lshl_b32', sr(sT1), sr(sCG), 7)
    op('v_add_u32', vr(8), sr(sT1), vr(8))
    op('v_add_u32', vr(9), sr(sT3), vr(4))
    op('v_lshlrev_b32', vr(vB1), 10, vr(9))
    op('v_add_u32', vr(vB1), vr(vB1), vr(8))
    op('v_mul_u32_u24', vr(vB3), 3072, vr(9))
    op('v_add_u32', vr(vB3), vr(vB3), vr(8))
    for i, dlt in enumerate((-1, 1, -2, 2)):
        op('v_add_u32', vr(10), dlt, vr(7))
        op('v_lshlrev_b32', vr(vH[i]), 10, vr(10))
        op('v_add_u32', vr(vH[i]), vr(vH[i]), vr(5))
        if dlt < 0:
            op('v_cmp_gt_i32', 'vcc', 0, vr(10))
            op('v_mov_b32', vr(11), 0x7f000000)
            op('v_cndmask_b32', vr(vH[i]), vr(vH[i]), vr(11), 'vcc')
    g.wait(lgkm=0)
    srd(S_WS, 72, 73, WS_SIZE)
    op('v_mov_b32', vr(10), WS['EPOCH'])
    op('buffer_load_dword', vr(60), vr(10), sr(S_WS, 4), 0, mods='offen sc1')
    srd(S_X, 52, 53, 2048 * 1024)
    srd(S_W1, 60, 61, 512 * 1024)
    op('s_and_b32', sr(sROT), sr(sRB), 7)
    for s in range(8):
        op('s_add_u32', sr(sT0), sr(sROT), s)
        op('s_and_b32', sr(sT0), sr(sT0), 7)
        op('s_lshl_b32', sr(sT1), sr(sT0), 7)
        op('s_lshl_b32', sr(sT2), sr(sT0), 16)
        dma1(vXA, S_X, sr(sT1), L_X + 8192 * s, f'x{s}')
        dma1(vB1, S_W1, sr(sT2), L_W + 8192 * s, f'w1_{s}')
    srd(S_WQKV, 54, 55, 512 * 3072)
    qkv_stage_load(0)
    srd(S_H, 72, 73, 2048 * 1024)
    srd(S_WO, 56, 57, 512 * 1024)
    srd(S_W2, 62, 63, 512 * 1024)
    srd(S_W3, 64, 65, 512 * 2752)
    srd(S_W4, 66, 67, 1376 * 1024)
    srd(S_OUT, 68, 69, 2048 * 1024)
    op('s_lshl_b32', sr(sT0), 's2', 3)
    op('s_add_u32', sr(sT0), sr(sT0), sr(sW))
    op('s_lshl_b32', sr(sT0), sr(sT0), 7)
    op('s_add_u32', sr(sT0), sr(sT0), WS['STAMP'])
    op('v_mov_b32', vr(61), sr(sT0))
    if OPT['stamps'] == 2:
        srd(96, 70, 71, 256)
        op('s_or_b32', sr(sT0), 's2', sr(sW))
        op('s_cmp_eq_u32', sr(sT0), 0)
        op('s_cselect_b32', sr(sT0), 0, 0x1000)
        op('v_mov_b32', vr(61), sr(sT0))
    op('v_lshrrev_b32', vr(4), 1, vr(vL15))
    op('v_xor_b32', vr(4), vr(4), vr(vG))
    op('v_lshlrev_b32', vr(4), 4, vr(4))
    op('v_lshl_add_u32', vr(4), vr(vL15), 7, vr(4))
    op('v_mov_b32', vr(51), vr(4))
    op('s_lshl_b32', sr(sT0), sr(sRU), 11)
    op('v_add_u32', vr(aX0), sr(sT0), vr(4))
    op('v_xor_b32', vr(aX1), 64, vr(aX0))
    op('v_add_u32', vr(aX0h), 65536, vr(aX0))
    op('v_add_u32', vr(aX1h), 65536, vr(aX1))
    op('v_lshrrev_b32', vr(5), 2, vr(vL15))
    op('v_lshl_add_u32', vr(6), vr(vG), 3, vr(5))
    op('v_lshlrev_b32', vr(6), 7, vr(6))
    op('v_and_b32', vr(7), 3, vr(vLANE))
    op('v_lshl_add_u32', vr(6), vr(7), 3, vr(6))
    op('v_lshrrev_b32', vr(5), 1, vr(5))
    op('v_and_b32', vr(7), 1, vr(vG))
    op('v_lshl_or_b32', vr(5), vr(7), 1, vr(5))
    op('v_mov_b32', vr(52), vr(6))
    op('v_mov_b32', vr(53), vr(5))
    op('s_lshl_b32', sr(sT0), sr(sCH), 1)
    for u, (lo, hi) in enumerate(((aW0, aW0h), (aW1, aW1h))):
        op('s_add_u32', sr(sT1), sr(sT0), u)
        op('v_xor_b32', vr(7), sr(sT1), vr(5))
        op('v_lshl_add_u32', vr(lo), vr(7), 5, vr(6))
        op('v_add_u32', vr(hi), 65536, vr(lo))
    for i in range(4):
        op('v_mov_b32', vr(vONES + i), 0x3f803f80)

def qkv_stage_load(s):
    slot = RING[s % 3]
    op('s_add_u32', sr(sT0), sr(sROT), s)
    op('s_and_b32', sr(sT0), sr(sT0), 7)
    op('s_mul_i32', sr(sT2), sr(sT0), 64 * 3072)
    for j in range(3):
        if j: op('s_add_u32', sr(sT2), sr(sT2), 1024)
        dma1(vB3, S_WQKV, sr(sT2), slot + 8192 * j, f'q{s}')

def rd_x(dst, addr, off):
    op('ds_read_b128', vr(dst, 4), vr(addr), mods=f'offset:{off}')
def rd_w(dst, addr, off):
    op('ds_read_b64_tr_b16', vr(dst, 2), vr(addr), mods=f'offset:{off}')
    op('ds_read_b64_tr_b16', vr(dst + 2, 2), vr(addr), mods=f'offset:{off + 512}')

def cross_g_sum(v, t):
    op('v_mov_b32', vr(t), vr(v))
    op('v_permlane16_swap_b32', vr(v), vr(t))
    op('v_add_f32', vr(v), vr(v), vr(t))
    op('v_mov_b32', vr(t), vr(v))
    op('v_permlane32_swap_b32', vr(v), vr(t))
    op('v_add_f32', vr(v), vr(v), vr(t))

GC1 = -2.0 * 0.7978845608028654 * 1.4426950408889634
GC2 = GC1 * 0.044715
import struct
def f2u(x): return struct.unpack('<I', struct.pack('<f', x))[0]
sGC1, sGC2 = 82, 83
def gelu_setup():
    op('s_mov_b32', sr(sGC1), f2u(GC1))
    op('s_mov_b32', sr(sGC2), f2u(GC2))
def gelu_list(regs, tmp):
    for x, t in zip(regs, tmp): op('v_mul_f32', vr(t), vr(x), vr(x))
    for x, t in zip(regs, tmp): op('v_fma_f32', vr(t), vr(t), sr(sGC2), vr(59))
    for x, t in zip(regs, tmp): op('v_mul_f32', vr(t), vr(t), vr(x))
    for x, t in zip(regs, tmp): op('v_exp_f32', vr(t), vr(t))
    for x, t in zip(regs, tmp): op('v_add_f32', vr(t), 1.0, vr(t))
    for x, t in zip(regs, tmp): op('v_rcp_f32', vr(t), vr(t))
    for x, t in zip(regs, tmp): op('v_mul_f32', vr(x), vr(x), vr(t))

def row_stats(dM, dRS, rowaddr, t0, t1, t2, t3):
    op('ds_read_b32', vr(t0), vr(rowaddr), mods=f'offset:{SC_RS - L_SCR}')
    op('ds_read_b32', vr(t1), vr(rowaddr), mods=f'offset:{SC_RS - L_SCR + 256}')
    op('ds_read_b32', vr(t2), vr(rowaddr), mods=f'offset:{SC_SQ - L_SCR}')
    op('ds_read_b32', vr(t3), vr(rowaddr), mods=f'offset:{SC_SQ - L_SCR + 256}')
    op('v_add_f32', vr(t0), vr(t0), vr(t1))
    op('v_add_f32', vr(t2), vr(t2), vr(t3))
    op('v_mul_f32', vr(dM), f2u(1.0 / 512), vr(t0))
    op('v_mul_f32', vr(t2), f2u(1.0 / 512), vr(t2))
    op('v_fma_f32', vr(t2), f'-{vr(dM)}', vr(dM), vr(t2))
    op('v_max_f32', vr(t2), 0, vr(t2))
    op('v_add_f32', vr(t1), f2u(1e-5), vr(t2))
    op('v_rsq_f32', vr(dRS), vr(t1))

def phase1a():
    g.comment("==== P1a: h tile ====")
    A0, A1, RS, SQ, C0, C1 = ACC, ACC + 4, ACC + 8, ACC + 12, ACC + 16, ACC + 20
    for r in range(ACC, ACC + 24): op('v_mov_b32', vr(r), 0)
    op('s_lshl_b32', sr(sMSKA), 0x5555, sr(sCH))
    op('s_lshl_b32', sr(sMSKB), 0x1111, sr(sRU))
    gelu_setup()
    op('v_mov_b32', vr(59), sr(sGC1))
    for s in range(8):
        g.wait_tag(f'x{s}'); g.wait_tag(f'w1_{s}')
        g.barrier()
        if s == 3: qkv_stage_load(1)
        if s == 6: qkv_stage_load(2)
        for j in range(2):
            f = FR + 12 * j
            rd_x(f, aX0 if j == 0 else aX1, 8192 * s)
            rd_w(f + 4, aW0h, 8192 * s + 4096 * j)
            rd_w(f + 8, aW1h, 8192 * s + 4096 * j)
        for j in range(2):
            t = 2 * s + j
            f = FR + 12 * j
            mfma(A0, f + 4, f)
            mfma(A1, f + 8, f)
            guard(sMSKA, t, f'L1a_{t}a', lambda: (mfma(RS, vONES, f), mfma(SQ, f, f)))
            guard(sMSKB, t, f'L1a_{t}b', lambda: (mfma(C0, f + 4, vONES), mfma(C1, f + 8, vONES)))
    stamp()
    op('v_readfirstlane_b32', sr(sT), vr(60))
    op('s_add_u32', sr(sT), sr(sT), 8)
    op('s_sub_u32', sr(sT0), sr(sCG), sr(sROT))
    op('s_and_b32', sr(sT0), sr(sT0), 7)
    op('s_lshl_b32', sr(sT0), sr(sT0), 13)
    op('s_lshl_b32', sr(sT1), sr(sRU), 11)
    op('s_add_u32', sr(sT0), sr(sT0), sr(sT1))
    op('v_lshrrev_b32', vr(4), 1, vr(vG))
    op('s_lshl_b32', sr(sT1), sr(sCH), 2)
    op('v_add_u32', vr(4), sr(sT1), vr(4))
    op('v_lshrrev_b32', vr(5), 1, vr(vL15))
    op('v_and_b32', vr(6), 1, vr(vG))
    op('v_lshlrev_b32', vr(6), 3, vr(6))
    op('v_lshl_add_u32', vr(6), vr(vL15), 7, vr(6))
    op('v_add_u32', vr(6), sr(sT0), vr(6))
    for u in range(2):
        op('v_add_u32', vr(7), 2 * u, vr(4))
        op('v_xor_b32', vr(7), vr(7), vr(5))
        op('v_lshl_add_u32', vr(7), vr(7), 4, vr(6))
        op('ds_read_b64', vr(vXR + 2 * u, 2), vr(7))
    op('s_lshl_b32', sr(sT0), sr(sCH), 8)
    op('s_lshl_b32', sr(sT1), sr(sRU), 6)
    op('s_add_u32', sr(sT0), sr(sT0), sr(sT1))
    op('s_add_u32', sr(sT0), sr(sT0), L_SCR)
    op('v_lshlrev_b32', vr(8), 2, vr(vL15))
    op('v_add_u32', vr(8), sr(sT0), vr(8))
    op('ds_write_b32', vr(8), vr(RS), mods=f'offset:{SC_RS - L_SCR}')
    op('v_and_b32', vr(9), 3, vr(vL15))
    op('v_cmp_eq_u32', 'vcc', 1, vr(9))
    op('v_cndmask_b32', vr(10), vr(SQ), vr(SQ + 1), 'vcc')
    op('v_cmp_eq_u32', 'vcc', 2, vr(9))
    op('v_cndmask_b32', vr(10), vr(10), vr(SQ + 2), 'vcc')
    op('v_cmp_eq_u32', 'vcc', 3, vr(9))
    op('v_cndmask_b32', vr(10), vr(10), vr(SQ + 3), 'vcc')
    op('v_lshrrev_b32', vr(9), 2, vr(vL15))
    op('v_cmp_eq_u32', 'vcc', vr(9), vr(vG))
    op('s_and_saveexec_b64', 's[88:89]', 'vcc')
    op('ds_write_b32', vr(8), vr(10), mods=f'offset:{SC_SQ - L_SCR}')
    op('s_mov_b64', 'exec', 's[88:89]')
    op('s_lshl_b32', sr(sT0), sr(sRU), 8)
    op('s_lshl_b32', sr(sT1), sr(sCH), 7)
    op('s_add_u32', sr(sT0), sr(sT0), sr(sT1))
    op('s_add_u32', sr(sT0), sr(sT0), SC_CS)
    op('v_lshlrev_b32', vr(9), 4, vr(vG))
    op('v_add_u32', vr(9), sr(sT0), vr(9))
    op('v_cmp_eq_u32', 'vcc', 0, vr(vL15))
    op('s_and_saveexec_b64', 's[88:89]', 'vcc')
    op('ds_write_b128', vr(9), vr(C0, 4))
    op('ds_write_b128', vr(9), vr(C1, 4), mods='offset:64')
    op('s_mov_b64', 'exec', 's[88:89]')
    g.wait(lgkm=0)
    g.barrier()
    op('s_lshl_b32', sr(sT1), sr(sRU), 6)
    op('s_add_u32', sr(sT1), sr(sT1), L_SCR)
    op('v_lshlrev_b32', vr(8), 2, vr(vL15))
    op('v_add_u32', vr(8), sr(sT1), vr(8))
    op('s_lshl_b32', sr(sT1), sr(sCH), 7)
    op('s_add_u32', sr(sT1), sr(sT1), SC_CS)
    op('v_lshlrev_b32', vr(9), 4, vr(vG))
    op('v_add_u32', vr(9), sr(sT1), vr(9))
    F = FR
    for q in range(4):
        op('ds_read_b128', vr(F + 8 * q, 4), vr(9), mods=f'offset:{256 * q}')
        op('ds_read_b128', vr(F + 8 * q + 4, 4), vr(9), mods=f'offset:{256 * q + 64}')
    row_stats(vM, vRS1, 8, 10, 11, 12, 13)
    op('v_mul_f32', vr(10), vr(vRS1), vr(vRS1))
    op('v_mov_b32', vr(11), f2u(1e-5))
    op('v_fma_f32', vr(10), vr(12), vr(10), vr(11))
    op('v_rsq_f32', vr(10), vr(10))
    op('v_mul_f32', vr(14), vr(vRS1), vr(10))
    for i in range(8):
        op('v_add_f32', vr(F + i), vr(F + i), vr(F + 8 + i))
        op('v_add_f32', vr(F + 16 + i), vr(F + 16 + i), vr(F + 24 + i))
    for i in range(8):
        op('v_add_f32', vr(F + i), vr(F + i), vr(F + 16 + i))
    for i in range(8):
        op('v_fma_f32', vr(A0 + i), f'-{vr(vM)}', vr(F + i), vr(A0 + i))
    for i in range(8):
        op('v_mul_f32', vr(A0 + i), vr(14), vr(A0 + i))
    gelu_list([A0 + i for i in range(8)], [F + 32 + i for i in range(8)])
    P = F + 40
    for i in range(4):
        op('v_cvt_pk_bf16_f32', vr(P + i), vr(A0 + 2 * i), vr(A0 + 2 * i + 1))
    op('v_permlane16_swap_b32', vr(P), vr(P + 2))
    op('v_permlane16_swap_b32', vr(P + 1), vr(P + 3))
    tile_store_offset(15)
    op('buffer_store_dwordx4', vr(P, 4), vr(15), sr(S_WS, 4), 0, mods=f'offen sc1')
    g.tag_last_vm('hstore')

def tile_store_offset(dst):
    op('s_lshl_b32', sr(sT0), sr(sRB), 6)
    op('s_lshl_b32', sr(sT1), sr(sRU), 4)
    op('s_add_u32', sr(sT0), sr(sT0), sr(sT1))
    op('v_add_u32', vr(4), sr(sT0), vr(vL15))
    op('v_lshlrev_b32', vr(4), 10, vr(4))
    op('v_and_b32', vr(5), 1, vr(vG))
    op('v_lshlrev_b32', vr(5), 5, vr(5))
    op('v_lshrrev_b32', vr(6), 1, vr(vG))
    op('v_lshl_add_u32', vr(5), vr(6), 4, vr(5))
    op('s_lshl_b32', sr(sT0), sr(sCG), 7)
    op('s_lshl_b32', sr(sT1), sr(sCH), 6)
    op('s_add_u32', sr(sT0), sr(sT0), sr(sT1))
    op('v_add3_u32', vr(dst), vr(4), vr(5), sr(sT0))


MARKS = {}
POLL_LIMIT = 200000
def wave0_begin(lbl):
    op('s_cmp_eq_u32', sr(sW), 0)
    op('s_cbranch_scc0', lbl)
    g.div_begin()
def wave0_end(lbl):
    g.div_end()
    g.label(lbl)

_lab = [0]
def newlab(p):
    _lab[0] += 1
    return f'L_{p}_{_lab[0]}'

def publish(phase):
    lbl = newlab('pub')
    wave0_begin(lbl)
    op('s_add_u32', sr(sT0), sr(sT), phase)
    op('v_mov_b32', vr(12), sr(sT0))
    op('s_lshl_b32', sr(sT1), sr(sFI), 7)
    op('s_add_u32', sr(sT1), sr(sT1), WS['FLAGS'])
    op('v_mov_b32', vr(13), sr(sT1))
    op('s_mov_b64', 's[88:89]', 'exec')
    op('s_mov_b64', 'exec', 1)
    op('buffer_store_dword', vr(12), vr(13), sr(S_WS, 4), 0, mods='offen sc1')
    op('s_mov_b64', 'exec', 's[88:89]')
    wave0_end(lbl)

def poll(first, n, phase):
    lbl = newlab('poll')
    wave0_begin(lbl)
    op('v_add_u32', vr(12), sr(first), vr(vLANE))
    op('v_cmp_gt_u32', 'vcc', 256, vr(12))
    op('v_cmp_gt_u32', 's[88:89]', n, vr(vLANE))
    op('s_and_b64', 'vcc', 'vcc', 's[88:89]')
    op('v_mov_b32', vr(13), sr(sFI))
    op('v_cndmask_b32', vr(12), vr(13), vr(12), 'vcc')
    op('v_lshlrev_b32', vr(12), 7, vr(12))
    op('v_add_u32', vr(63), WS['FLAGS'], vr(12))
    op('s_add_u32', sr(sT0), sr(sT), phase)
    op('s_mov_b32', sr(sT1), 0)
    loop = newlab('pl'); done = newlab('pd')
    g.label(loop)
    op('buffer_load_dword', vr(12), vr(63), sr(S_WS, 4), 0, mods='offen sc1')
    g.force_wait('vmcnt(0)'); g.vm = []
    op('v_subrev_u32', vr(12), sr(sT0), vr(12))
    op('v_cmp_ge_u32', 'vcc', 7 - phase, vr(12))
    op('s_cmp_eq_u64', 'vcc', 'exec')
    op('s_cbranch_scc1', done)
    op('s_sleep', 1)
    op('s_add_u32', sr(sT1), sr(sT1), 1)
    op('s_cmp_lt_u32', sr(sT1), POLL_LIMIT)
    op('s_cbranch_scc1', loop)
    g.label(done)
    wave0_end(lbl)

aQx0, aQx1, aQA, aQB, aQC = 54, 55, 56, 57, 58
def w2_chunk_load(i):
    op('s_mov_b32', sr(sT2), 65536 * i)
    dma1(vB1, S_W2, sr(sT2), L_X + 8192 * i, f'w2_{i}')

def phase1b():
    g.comment("==== P1b: q,k,v tiles ====")
    Q0, Q1, K0, K1, V0, V1, CQ, CK, CV = [ACC + 4 * i for i in range(9)]
    for r in range(ACC, ACC + 36): op('v_mov_b32', vr(r), 0)
    op('s_lshl_b32', sr(sT0), sr(sCH), 12)
    op('v_add_u32', vr(aQx0), sr(sT0), vr(51))
    op('v_xor_b32', vr(aQx1), 64, vr(aQx0))
    op('v_xor_b32', vr(4), sr(sRU), vr(53))
    op('v_lshl_add_u32', vr(4), vr(4), 5, vr(52))
    for reg, base in zip((aQA, aQB, aQC), RING):
        op('v_add_u32', vr(reg), base, vr(4))
    for s in range(8):
        g.wait_tag(f'q{s}')
        if s == 1: g.wait_tag('hstore')
        g.barrier()
        if s == 1: publish(1)
        if s >= 1 and s + 2 < 8: qkv_stage_load(s + 2)
        if s >= 1: w2_chunk_load(s - 1)
        slot = (aQA, aQB, aQC)[s % 3]
        for j in range(2):
            f = FR + 20 * j
            ax = aQx0 if j == 0 else aQx1
            rd_x(f, ax, 8192 * s)
            rd_w(f + 8, slot, 4096 * j)
            rd_x(f + 4, ax, 8192 * s + 2048)
            rd_w(f + 12, slot, 8192 + 4096 * j)
            rd_w(f + 16, slot, 16384 + 4096 * j)
        for j in range(2):
            t = 2 * s + j
            f = FR + 20 * j
            mfma(Q0, f + 8, f); mfma(Q1, f + 8, f + 4)
            mfma(K0, f + 12, f); mfma(K1, f + 12, f + 4)
            mfma(V0, f + 16, f); mfma(V1, f + 16, f + 4)
            guard(sMSKA, t, f'L1b_{t}', lambda: (mfma(CQ, f + 8, vONES), mfma(CK, f + 12, vONES), mfma(CV, f + 16, vONES)))
    g.wait(lgkm=0)
    stamp()
    op('s_mul_i32', sr(sT0), sr(sCH), 768)
    op('s_lshl_b32', sr(sT1), sr(sRU), 6)
    op('s_add_u32', sr(sT0), sr(sT0), sr(sT1))
    op('s_add_u32', sr(sT0), sr(sT0), SC_CQ)
    op('v_lshlrev_b32', vr(9), 4, vr(vG))
    op('v_add_u32', vr(9), sr(sT0), vr(9))
    op('v_cmp_eq_u32', 'vcc', 0, vr(vL15))
    op('s_and_saveexec_b64', 's[88:89]', 'vcc')
    op('ds_write_b128', vr(9), vr(CQ, 4))
    op('ds_write_b128', vr(9), vr(CK, 4), mods='offset:256')
    op('ds_write_b128', vr(9), vr(CV, 4), mods='offset:512')
    op('s_mov_b64', 'exec', 's[88:89]')
    op('s_lshl_b32', sr(sT4), sr(sRB), 3)
    op('s_sub_u32', sr(sT4), sr(sT4), 8)
    poll(sT4, 24, 1)
    g.wait(lgkm=0)
    g.barrier()
    w2_chunk_load(7)
    for c in range(8):
        op('s_mov_b32', sr(sT2), 128 * c)
        set_m0(L_W + 8192 * c, 1024)
        op('buffer_load_dwordx4', vr(vH[c >> 1]), sr(S_H, 4), sr(sT2), mods='offen sc1 lds')
        g.tag_last_vm(f'h{c}')
    stamp()
    F = FR
    op('s_lshl_b32', sr(sT1), sr(sRU), 6)
    op('s_add_u32', sr(sT1), sr(sT1), SC_CQ)
    op('v_lshlrev_b32', vr(9), 4, vr(vG))
    op('v_add_u32', vr(9), sr(sT1), vr(9))
    for j in range(3):
        op('ds_read_b128', vr(F + 4 * j, 4), vr(9), mods=f'offset:{256 * j}')
        op('ds_read_b128', vr(F + 12 + 4 * j, 4), vr(9), mods=f'offset:{768 + 256 * j}')
    op('s_lshl_b32', sr(sT1), sr(sCH), 7)
    op('s_add_u32', sr(sT1), sr(sT1), L_SCR)
    op('v_lshlrev_b32', vr(8), 2, vr(vL15))
    op('v_add_u32', vr(8), sr(sT1), vr(8))
    MA, RA, MB, RB = F + 24, F + 25, F + 26, F + 27
    row_stats(MA, RA, 8, 10, 11, 12, 13)
    op('v_add_u32', vr(8), 64, vr(8))
    row_stats(MB, RB, 8, 10, 11, 12, 13)
    for i in range(12):
        op('v_add_f32', vr(F + i), vr(F + i), vr(F + 12 + i))
    op('v_lshrrev_b32', vr(4), 1, vr(vG))
    op('s_lshl_b32', sr(sT1), sr(sRU), 1)
    op('v_add_u32', vr(4), sr(sT1), vr(4))
    op('v_lshrrev_b32', vr(5), 1, vr(vL15))
    op('v_xor_b32', vr(4), vr(4), vr(5))
    op('v_lshlrev_b32', vr(4), 4, vr(4))
    op('v_and_b32', vr(5), 1, vr(vG))
    op('v_lshl_add_u32', vr(4), vr(5), 3, vr(4))
    op('v_lshl_add_u32', vr(4), vr(vL15), 7, vr(4))
    op('s_lshl_b32', sr(sT1), sr(sCH), 12)
    op('s_add_u32', sr(sT1), sr(sT1), L_R)
    op('v_add_u32', vr(4), sr(sT1), vr(4))
    for j, (T0, T1) in enumerate(((Q0, Q1), (K0, K1), (V0, V1))):
        for i, (T_, M_, R_) in enumerate(((T0, MA, RA), (T1, MB, RB))):
            for r in range(4):
                op('v_fma_f32', vr(T_ + r), f'-{vr(M_)}', vr(F + 4 * j + r), vr(T_ + r))
            for r in range(4):
                op('v_mul_f32', vr(T_ + r), vr(R_), vr(T_ + r))
            P = F + 28 + 2 * (2 * j + i)
            op('v_cvt_pk_bf16_f32', vr(P), vr(T_), vr(T_ + 1))
            op('v_cvt_pk_bf16_f32', vr(P + 1), vr(T_ + 2), vr(T_ + 3))
            op('ds_write_b64', vr(4), vr(P, 2), mods=f'offset:{8192 * j + 2048 * i}')
    g.wait(lgkm=0)
    g.barrier()
    lbl = newlab('halo')
    op('s_cmp_lt_u32', sr(sW), 4)
    op('s_cbranch_scc0', lbl)
    g.div_begin()
    op('s_lshr_b32', sr(sT0), sr(sW), 1)
    op('s_add_u32', sr(sT0), sr(sT0), 1)
    op('s_lshl_b32', sr(sT0), sr(sT0), 13)
    op('s_and_b32', sr(sT1), sr(sW), 1)
    op('s_lshl_b32', sr(sT2), sr(sT1), 10)
    op('s_add_u32', sr(sT0), sr(sT0), sr(sT2))
    op('s_add_u32', sr(sT0), sr(sT0), L_R + 48 * 128)
    op('v_lshrrev_b32', vr(4), 3, vr(vLANE))
    op('s_lshl_b32', sr(sT1), sr(sT1), 2)
    op('v_add_u32', vr(5), sr(sT1), vr(vG))
    op('v_and_b32', vr(6), 7, vr(vLANE))
    op('v_xor_b32', vr(5), vr(5), vr(6))
    op('v_lshlrev_b32', vr(5), 4, vr(5))
    op('v_lshl_add_u32', vr(5), vr(4), 7, vr(5))
    op('v_add_u32', vr(5), sr(sT0), vr(5))
    op('ds_read_b128', vr(F, 4), vr(5))
    op('s_lshl_b32', sr(sT0), sr(sFI), 12)
    op('s_add_u32', sr(sT0), sr(sT0), sr(sT5))
    op('s_add_u32', sr(sT0), sr(sT0), WS['HALO'])
    op('v_lshlrev_b32', vr(6), 4, vr(vLANE))
    op('v_add_u32', vr(6), sr(sT0), vr(6))
    op('buffer_store_dwordx4', vr(F, 4), vr(6), sr(S_WS, 4), 0, mods='offen sc1')
    g.div_end()
    g.label(lbl)
    MARKS['halo'] = g.mark()

def small_gemm(A0, A1, nch, aregs, wregs, atag, wtag, pre=None, last_half=False, prewait=None):
    for c in range(nch):
        g.wait_tag(atag(c)); g.wait_tag(wtag(c))
        if prewait: prewait(c)
        g.barrier()
        if pre: pre(c)
        steps = 1 if (last_half and c == nch - 1) else 2
        x0, x1, xo = aregs(c); w0, w1, wo_ = wregs(c)
        for j in range(steps):
            f = FR + 12 * j
            rd_x(f, x0 if j == 0 else x1, xo)
            rd_w(f + 4, w0, wo_ + 4096 * j)
            rd_w(f + 8, w1, wo_ + 4096 * j)
        for j in range(steps):
            f = FR + 12 * j
            mfma(A0, f + 4, f); mfma(A1, f + 8, f)

def phase2():
    g.comment("==== P2: x1 tile ====")
    A0, A1 = ACC, ACC + 4
    for r in range(ACC, ACC + 8): op('v_mov_b32', vr(r), 0)
    def prewait(c):
        if c == 6: g.wait_mark(MARKS['halo'])
    def pre(c):
        if c == 6: publish(2)
    small_gemm(A0, A1, 8, lambda c: (aX0h, aX1h, 8192 * c), lambda c: (aW0, aW1, 8192 * c),
               lambda c: f'h{c}', lambda c: f'w2_{c}', pre=pre, prewait=prewait)
    stamp()
    F = FR
    for u in range(2):
        for i in range(2):
            op('v_lshlrev_b32', vr(F + 4 * u + 2 * i), 16, vr(vXR + 2 * u + i))
            op('v_and_b32', vr(F + 4 * u + 2 * i + 1), 0xffff0000, vr(vXR + 2 * u + i))
    op('v_mul_f32', vr(10), vr(vM), vr(vRS1))
    for i in range(8):
        op('v_fma_f32', vr(F + 8 + i), vr(F + i), vr(vRS1), f'-{vr(10)}')
    for i in range(8):
        op('v_add_f32', vr(A0 + i), vr(A0 + i), vr(F + 8 + i))
    P = F + 16
    for i in range(4):
        op('v_cvt_pk_bf16_f32', vr(P + i), vr(A0 + 2 * i), vr(A0 + 2 * i + 1))
    for i in range(4):
        op('v_lshlrev_b32', vr(F + 8 + 2 * i), 16, vr(P + i))
        op('v_and_b32', vr(F + 8 + 2 * i + 1), 0xffff0000, vr(P + i))
    for i in range(8):
        op('v_add_f32', vr(vBASE + i), vr(F + i), vr(F + 8 + i))
    op('v_add_f32', vr(10), vr(F + 8), vr(F + 9))
    op('v_mul_f32', vr(11), vr(F + 8), vr(F + 8))
    op('v_fmac_f32', vr(11), vr(F + 9), vr(F + 9))
    for i in range(2, 8):
        op('v_add_f32', vr(10), vr(10), vr(F + 8 + i))
        op('v_fmac_f32', vr(11), vr(F + 8 + i), vr(F + 8 + i))
    op('v_permlane16_swap_b32', vr(P), vr(P + 2))
    op('v_permlane16_swap_b32', vr(P + 1), vr(P + 3))
    tile_store_offset(15)
    op('buffer_store_dwordx4', vr(P, 4), vr(15), sr(S_WS, 4), sr(sX1OFF), mods='offen sc1')
    g.tag_last_vm('x1st')
    cross_g_sum(10, 12)
    cross_g_sum(11, 12)
    op('s_lshl_b32', sr(sT0), sr(sCH), 9)
    op('s_lshl_b32', sr(sT1), sr(sRU), 7)
    op('s_add_u32', sr(sT0), sr(sT0), sr(sT1))
    op('s_add_u32', sr(sT0), sr(sT0), SC_X1)
    op('v_lshlrev_b32', vr(12), 3, vr(vL15))
    op('v_add_u32', vr(12), sr(sT0), vr(12))
    op('ds_write_b64', vr(12), vr(10, 2))
    g.wait(lgkm=0)
    g.barrier()
    lbl = newlab('x1s')
    wave0_begin(lbl)
    op('v_lshlrev_b32', vr(12), 3, vr(vLANE))
    op('v_add_u32', vr(13), SC_X1, vr(12))
    op('ds_read_b64', vr(4, 2), vr(13))
    op('ds_read_b64', vr(6, 2), vr(13), mods='offset:512')
    op('v_add_f32', vr(4), vr(4), vr(6))
    op('v_add_f32', vr(5), vr(5), vr(7))
    op('s_lshl_b32', sr(sT0), sr(sFI), 9)
    op('s_add_u32', sr(sT0), sr(sT0), WS['X1ST'])
    op('v_add_u32', vr(12), sr(sT0), vr(12))
    op('buffer_store_dwordx2', vr(4, 2), vr(12), sr(S_WS, 4), 0, mods='offen sc1')
    wave0_end(lbl)
    mk = g.mark()
    w3_load()
    g.wait_mark(mk)
    g.barrier()
    publish(3)
    stamp()

L_HALO = 98304
def attention():
    g.comment("==== attention ====")
    F = FR
    op('s_sub_u32', sr(sT4), sr(sFI), 8)
    poll(sT4, 1, 2)
    g.barrier()
    lbl = newlab('hl')
    op('s_cmp_lt_u32', sr(sW), 4)
    op('s_cbranch_scc0', lbl)
    g.div_begin()
    op('s_and_b32', sr(sT1), sr(sW), 1)
    op('s_lshl_b32', sr(sT1), sr(sT1), 2)
    op('v_add_u32', vr(5), sr(sT1), vr(vG))
    op('v_and_b32', vr(6), 7, vr(vLANE))
    op('v_xor_b32', vr(5), vr(5), vr(6))
    op('v_lshlrev_b32', vr(5), 4, vr(5))
    op('v_lshrrev_b32', vr(4), 3, vr(vLANE))
    op('v_lshl_add_u32', vr(5), vr(4), 7, vr(5))
    op('s_sub_u32', sr(sT0), sr(sFI), 8)
    op('s_lshl_b32', sr(sT0), sr(sT0), 12)
    op('s_add_u32', sr(sT0), sr(sT0), sr(sT5))
    op('s_add_u32', sr(sT0), sr(sT0), WS['HALO'])
    op('s_cmp_eq_u32', sr(sRB), 0)
    op('s_cselect_b32', sr(sT0), 0x7f000000, sr(sT0))
    op('v_add_u32', vr(5), sr(sT0), vr(5))
    set_m0(L_HALO, 1024)
    op('buffer_load_dwordx4', vr(5), sr(S_WS, 4), 0, mods='offen sc1 lds')
    g.force_wait('vmcnt(0)')
    g.div_end()
    g.label(lbl)
    u_s, hp_s = sT2, sT3
    op('s_lshr_b32', sr(u_s), sr(sW), 1)
    op('s_and_b32', sr(hp_s), sr(sW), 1)
    B0, B1 = F + 0, F + 4
    op('v_mov_b32', vr(10), 0xff800000)
    op('v_mov_b32', vr(11), 0)
    op('s_or_b32', sr(sT0), sr(sRB), sr(u_s))
    op('s_cmp_eq_u32', sr(sT0), 0)
    op('s_cselect_b32', sr(sT0), 64, 0)
    op('v_add_u32', vr(9), sr(sT0), vr(vL15))
    op('v_add_u32', vr(9), 2, vr(9))
    for r in range(4):
        op('v_lshl_add_u32', vr(4), vr(vG), 2, r)
        op('v_xor_b32', vr(5), vr(4), vr(vL15))
        op('v_and_b32', vr(5), 1, vr(5))
        op('v_cmp_eq_u32', 's[88:89]', 0, vr(5))
        op('v_cmp_ge_u32', 'vcc', vr(4), vr(9))
        op('s_and_b64', 'vcc', 'vcc', 's[88:89]')
        op('v_cndmask_b32', vr(B0 + r), vr(10), vr(11), 'vcc')
        op('v_cmp_le_u32', 'vcc', vr(4), vr(vL15))
        op('s_and_b64', 'vcc', 'vcc', 's[88:89]')
        op('v_cndmask_b32', vr(B1 + r), vr(10), vr(11), 'vcc')
    op('v_lshrrev_b32', vr(4), 1, vr(vG))
    op('s_lshl_b32', sr(sT0), sr(hp_s), 2)
    op('v_add_u32', vr(4), sr(sT0), vr(4))
    op('v_lshrrev_b32', vr(5), 1, vr(vL15))
    op('v_and_b32', vr(6), 1, vr(vG))
    op('v_lshlrev_b32', vr(6), 3, vr(6))
    op('v_lshl_add_u32', vr(6), vr(vL15), 7, vr(6))
    aR = [F + 8, F + 9]
    for i in range(2):
        op('v_add_u32', vr(7), 2 * i, vr(4))
        op('v_xor_b32', vr(7), vr(7), vr(5))
        op('v_lshl_add_u32', vr(aR[i]), vr(7), 4, vr(6))
    op('v_lshrrev_b32', vr(4), 2, vr(vL15))
    op('v_lshl_add_u32', vr(5), vr(vG), 2, vr(4))
    op('v_lshrrev_b32', vr(7), 1, vr(5))
    op('v_and_b32', vr(8), 3, vr(vLANE))
    op('v_lshrrev_b32', vr(9), 1, vr(8))
    op('s_lshl_b32', sr(sT0), sr(hp_s), 2)
    op('v_add_u32', vr(9), sr(sT0), vr(9))
    op('v_and_b32', vr(8), 1, vr(8))
    op('v_lshlrev_b32', vr(8), 3, vr(8))
    op('v_lshl_add_u32', vr(8), vr(5), 7, vr(8))
    aT = [F + 10, F + 11]
    for i in range(2):
        op('v_add_u32', vr(4), 2 * i, vr(9))
        op('v_xor_b32', vr(4), vr(4), vr(7))
        op('v_lshl_add_u32', vr(aT[i]), vr(4), 4, vr(8))
    sCUR, sPK, sPV = sT0, sT1, sT4
    op('s_lshl_b32', sr(sCUR), sr(u_s), 11)
    op('s_add_u32', sr(sCUR), sr(sCUR), L_R)
    op('s_add_u32', sr(sPK), sr(sCUR), 8192 - 2048)
    op('s_add_u32', sr(sPV), sr(sCUR), 16384 - 2048)
    op('s_cmp_eq_u32', sr(u_s), 0)
    op('s_cselect_b32', sr(sPK), L_HALO, sr(sPK))
    op('s_cselect_b32', sr(sPV), L_HALO + 2048, sr(sPV))
    g.barrier()
    QF = [F + 12, F + 16]; K0F = [F + 20, F + 24]; K1F = [F + 28, F + 32]; VF = [F + 36, F + 40]
    for i in range(2):
        for q in (QF[i], K0F[i], K1F[i]):
            op('v_mov_b32', vr(q + 2), 0); op('v_mov_b32', vr(q + 3), 0)
    for i in range(2):
        op('v_add_u32', vr(4), sr(sCUR), vr(aR[i]))
        op('ds_read_b64', vr(QF[i], 2), vr(4))
        op('ds_read_b64', vr(K1F[i], 2), vr(4), mods='offset:8192')
        op('v_add_u32', vr(5), sr(sPK), vr(aR[i]))
        op('ds_read_b64', vr(K0F[i], 2), vr(5))
        op('v_add_u32', vr(6), sr(sPV), vr(aT[i]))
        op('ds_read_b64_tr_b16', vr(VF[i], 2), vr(6))
        op('v_add_u32', vr(7), sr(sCUR), vr(aT[i]))
        op('ds_read_b64_tr_b16', vr(VF[i] + 2, 2), vr(7), mods='offset:16384')
    S0 = [ACC, ACC + 8]; S1 = [ACC + 4, ACC + 12]; OO = [ACC + 16, ACC + 20]
    for i in range(2):
        mfma(S0[i], K0F[i], QF[i], '0'); mfma(S1[i], K1F[i], QF[i], '0')
    op('s_mov_b32', sr(sT2), f2u(0.25 * 1.4426950408889634))
    PK = [F + 44, F + 48]
    for i in range(2):
        t = [S0[i] + r for r in range(4)] + [S1[i] + r for r in range(4)]
        b = [B0 + r for r in range(4)] + [B1 + r for r in range(4)]
        for a, bb in zip(t, b): op('v_fma_f32', vr(a), vr(a), sr(sT2), vr(bb))
        op('v_max3_f32', vr(4), vr(t[0]), vr(t[1]), vr(t[2]))
        op('v_max3_f32', vr(5), vr(t[3]), vr(t[4]), vr(t[5]))
        op('v_max3_f32', vr(4), vr(4), vr(t[6]), vr(t[7]))
        op('v_max_f32', vr(4), vr(4), vr(5))
        op('v_mov_b32', vr(5), vr(4))
        op('v_permlane16_swap_b32', vr(4), vr(5))
        op('v_max_f32', vr(4), vr(4), vr(5))
        op('v_mov_b32', vr(5), vr(4))
        op('v_permlane32_swap_b32', vr(4), vr(5))
        op('v_max_f32', vr(4), vr(4), vr(5))
        for a in t: op('v_sub_f32', vr(a), vr(a), vr(4))
        for a in t: op('v_exp_f32', vr(a), vr(a))
        op('v_add_f32', vr(6), vr(t[0]), vr(t[1]))
        for a in t[2:]: op('v_add_f32', vr(6), vr(6), vr(a))
        for k in range(4): op('v_cvt_pk_bf16_f32', vr(PK[i] + k), vr(t[2 * k]), vr(t[2 * k + 1]))
        mfma(OO[i], VF[i], PK[i], '0')
        cross_g_sum(6, 7)
        op('v_rcp_f32', vr(8 + i), vr(6))
    P = F + 52
    for i in range(2):
        for r in range(4): op('v_mul_f32', vr(OO[i] + r), vr(8 + i), vr(OO[i] + r))
        op('v_cvt_pk_bf16_f32', vr(P + 2 * i), vr(OO[i]), vr(OO[i] + 1))
        op('v_cvt_pk_bf16_f32', vr(P + 2 * i + 1), vr(OO[i] + 2), vr(OO[i] + 3))
    op('v_permlane16_swap_b32', vr(P), vr(P + 2))
    op('v_permlane16_swap_b32', vr(P + 1), vr(P + 3))
    op('s_lshr_b32', sr(sT0), sr(sW), 1)
    op('s_lshl_b32', sr(sT0), sr(sT0), 4)
    op('s_lshl_b32', sr(sT1), sr(sRB), 6)
    op('s_add_u32', sr(sT0), sr(sT0), sr(sT1))
    op('v_add_u32', vr(4), sr(sT0), vr(vL15))
    op('v_lshlrev_b32', vr(4), 10, vr(4))
    op('v_and_b32', vr(5), 1, vr(vG))
    op('v_lshlrev_b32', vr(5), 5, vr(5))
    op('v_lshrrev_b32', vr(6), 1, vr(vG))
    op('v_lshl_add_u32', vr(5), vr(6), 4, vr(5))
    op('s_and_b32', sr(sT1), sr(sW), 1)
    op('s_lshl_b32', sr(sT1), sr(sT1), 6)
    op('s_lshl_b32', sr(sT0), sr(sCG), 7)
    op('s_add_u32', sr(sT0), sr(sT0), sr(sT1))
    op('v_add3_u32', vr(4), vr(4), vr(5), sr(sT0))
    op('buffer_store_dwordx4', vr(P, 4), vr(4), sr(S_WS, 4), sr(sOOFF), mods='offen sc1')
    g.tag_last_vm('ost')

sRB128, sC16, sW3072, sW2048 = 90, 91, 92, 93
sX1OFF, sOOFF, sH2OFF = 94, 95, 87
vW3 = [200, 201, 202]
vKL = [203, 204, 205]
vPP = [206, 207, 208]
vX1 = [209, 210]
aX3 = [211, 212]
aW3 = [[213, 214], [215, 216], [217, 218]]
vH2 = 219
L_X1 = 98304
def p3_setup():
    op('s_lshr_b32', sr(sRB128), sr(sRB), 1)
    op('s_and_b32', sr(sT0), sr(sRB), 1)
    op('s_lshl_b32', sr(sT0), sr(sT0), 3)
    op('s_add_u32', sr(sC16), sr(sT0), sr(sCG))
    op('s_mul_i32', sr(sW3072), sr(sW), 3072)
    op('s_lshl_b32', sr(sW2048), sr(sW), 11)
    op('s_mov_b32', sr(sX1OFF), WS['X1'])
    op('s_mov_b32', sr(sOOFF), WS['O'])
    op('s_mov_b32', sr(sH2OFF), WS['H2A'])
    op('s_mul_i32', sr(sT1), sr(sC16), 192)
    for n in range(3):
        op('v_add_u32', vr(4), 64 * n, vr(vLANE))
        op('v_mul_u32_u24', vr(5), 171, vr(4))
        op('v_lshrrev_b32', vr(vKL[n]), 11, vr(5))
        op('v_mul_u32_u24', vr(5), 12, vr(vKL[n]))
        op('v_sub_u32', vr(vPP[n]), vr(4), vr(5))
        op('v_lshrrev_b32', vr(5), 1, vr(vPP[n]))
        op('v_lshrrev_b32', vr(6), 3, vr(vKL[n]))
        op('v_xor_b32', vr(5), vr(5), vr(6))
        op('v_lshlrev_b32', vr(5), 5, vr(5))
        op('v_and_b32', vr(6), 1, vr(vPP[n]))
        op('v_lshl_add_u32', vr(5), vr(6), 4, vr(5))
        op('v_mul_u32_u24', vr(6), 2752, vr(vKL[n]))
        op('v_add3_u32', vr(vW3[n]), vr(5), vr(6), sr(sT1))
    op('s_lshl_b32', sr(sT0), sr(sRB128), 7)
    op('s_lshl_b32', sr(sT1), sr(sW), 4)
    op('s_add_u32', sr(sT0), sr(sT0), sr(sT1))
    op('v_lshrrev_b32', vr(4), 3, vr(vLANE))
    op('v_add_u32', vr(4), sr(sT0), vr(4))
    op('v_and_b32', vr(6), 7, vr(vLANE))
    for j in range(2):
        op('v_add_u32', vr(5), 4 * j, vr(vG))
        op('v_xor_b32', vr(5), vr(5), vr(6))
        op('v_lshlrev_b32', vr(5), 4, vr(5))
        op('v_add_u32', vr(7), 8 * j, vr(4))
        op('v_lshl_add_u32', vr(vX1[j]), vr(7), 10, vr(5))
    op('s_lshl_b32', sr(sT0), sr(sRU), 12)
    op('s_add_u32', sr(sT0), sr(sT0), L_X1)
    op('v_add_u32', vr(aX3[0]), sr(sT0), vr(51))
    op('v_xor_b32', vr(aX3[1]), 64, vr(aX3[0]))
    op('v_lshrrev_b32', vr(4), 2, vr(vL15))
    op('v_lshl_add_u32', vr(4), vr(vG), 3, vr(4))
    op('v_mul_u32_u24', vr(4), 192, vr(4))
    op('v_and_b32', vr(5), 3, vr(vLANE))
    op('v_lshl_add_u32', vr(4), vr(5), 3, vr(4))
    op('v_and_b32', vr(5), 1, vr(vG))
    op('s_mul_i32', sr(sT0), sr(sCH), 3)
    for u in range(3):
        op('s_add_u32', sr(sT1), sr(sT0), u)
        op('v_xor_b32', vr(6), sr(sT1), vr(5))
        op('v_lshl_add_u32', vr(aW3[u][0]), vr(6), 5, vr(4))
        op('v_add_u32', vr(aW3[u][1]), 49152, vr(aW3[u][0]))
    op('s_lshl_b32', sr(sT2), sr(sRB), 6)
    op('s_lshl_b32', sr(sT3), sr(sW), 3)
    op('s_add_u32', sr(sT2), sr(sT2), sr(sT3))
    op('v_lshrrev_b32', vr(4), 3, vr(vLANE))
    op('v_add_u32', vr(4), sr(sT2), vr(4))
    op('v_mul_u32_u24', vr(vH2), H2A_PITCH, vr(4))
    op('v_and_b32', vr(5), 0x7f, vr(vXA))
    op('v_add_u32', vr(vH2), vr(vH2), vr(5))

def w3_load():
    for i in range(4):
        op('s_add_u32', sr(sT0), sr(sW), 8 * i)
        op('s_mul_i32', sr(sT2), sr(sT0), 16 * 2752)
        for n in range(3):
            op('s_add_u32', 'm0', sr(sW3072), 24576 * i + 1024 * n)
            op('buffer_load_dwordx4', vr(vW3[n]), sr(S_W3, 4), sr(sT2), mods='offen lds')
            g.tag_last_vm('w3')

def rd_w3(dst, u, ks):
    reg = aW3[u][0] if ks < 8 else aW3[u][1]
    off = (ks % 8) * 6144
    op('ds_read_b64_tr_b16', vr(dst, 2), vr(reg), mods=f'offset:{off}')
    op('ds_read_b64_tr_b16', vr(dst + 2, 2), vr(reg), mods=f'offset:{off + 768}')

def x1_stage_load(s):
    op('s_add_u32', sr(sT2), sr(sX1OFF), 128 * s)
    for j in range(2):
        op('s_add_u32', 'm0', sr(sW2048), L_X1 + 16384 * (s % 4) + 1024 * j)
        op('buffer_load_dwordx4', vr(vX1[j]), sr(S_WS, 4), sr(sT2), mods='offen sc1 lds')
        g.tag_last_vm(f'x1_{s}')

def phase3():
    g.comment("==== P3: h2a tile ====")
    skip = newlab('p3skip')
    AC = [[ACC + 4 * (3 * a + u) for u in range(3)] for a in range(2)]
    CS = [ACC + 24 + 4 * u for u in range(3)]
    for r in range(ACC, ACC + 36): op('v_mov_b32', vr(r), 0)
    g.wait_tag('w3'); g.wait_tag('ost')
    g.barrier()
    publish(4)
    op('s_cmp_eq_u32', sr(sC16), 15)
    op('s_cbranch_scc1', skip)
    for ks in range(16):
        f = FR + 12 * (ks & 1)
        for u in range(3): rd_w3(f + 4 * u, u, ks)
        for u in range(3): mfma(CS[u], f + 4 * u, vONES)
    g.wait(lgkm=0)
    stamp()
    op('s_lshl_b32', sr(sT4), sr(sRB128), 4)
    poll(sT4, 16, 3)
    g.barrier()
    ST = 220
    op('s_lshr_b32', sr(sT0), sr(sRU), 1)
    op('s_lshl_b32', sr(sT1), sr(sRB128), 1)
    op('s_add_u32', sr(sT0), sr(sT0), sr(sT1))
    op('s_lshl_b32', sr(sT0), sr(sT0), 12)
    op('s_and_b32', sr(sT1), sr(sRU), 1)
    op('s_lshl_b32', sr(sT1), sr(sT1), 8)
    op('s_add_u32', sr(sT0), sr(sT0), sr(sT1))
    op('s_add_u32', sr(sT0), sr(sT0), WS['X1ST'])
    op('v_lshlrev_b32', vr(4), 10, vr(vG))
    op('v_lshl_add_u32', vr(4), vr(vL15), 3, vr(4))
    op('v_add_u32', vr(4), sr(sT0), vr(4))
    for a in range(2):
        for i in range(2):
            op('buffer_load_dwordx2', vr(ST + 4 * a + 2 * i, 2), vr(4), sr(S_WS, 4), 0, mods=f'offen offset:{128 * a + 512 * i} sc1')
    for s in range(4): x1_stage_load(s)
    stamp()
    for s in range(8):
        g.wait_tag(f'x1_{s}')
        g.barrier()
        if s >= 1 and s + 3 < 8: x1_stage_load(s + 3)
        for j in range(2):
            ks = 2 * s + j
            f = FR + 20 * j
            rd_x(f, aX3[j], 16384 * (s % 4))
            rd_w3(f + 8, 0, ks)
            rd_x(f + 4, aX3[j], 16384 * (s % 4) + 2048)
            rd_w3(f + 12, 1, ks)
            rd_w3(f + 16, 2, ks)
        for j in range(2):
            f = FR + 20 * j
            for u in range(3):
                for a in range(2):
                    mfma(AC[a][u], f + 8 + 4 * u, f + 4 * a)
    g.wait(lgkm=0)
    stamp()
    g.barrier()
    F = FR
    MS = []
    for a in range(2):
        op('v_add_f32', vr(ST + 4 * a), vr(ST + 4 * a), vr(ST + 4 * a + 2))
        op('v_add_f32', vr(ST + 4 * a + 1), vr(ST + 4 * a + 1), vr(ST + 4 * a + 3))
        cross_g_sum(ST + 4 * a, 4)
        cross_g_sum(ST + 4 * a + 1, 4)
        m_, q_ = ST + 4 * a, ST + 4 * a + 1
        op('v_mul_f32', vr(m_), f2u(1.0 / 512), vr(m_))
        op('v_mul_f32', vr(q_), f2u(1.0 / 512), vr(q_))
        op('v_fma_f32', vr(q_), f'-{vr(m_)}', vr(m_), vr(q_))
        op('v_max_f32', vr(q_), 0, vr(q_))
        op('v_add_f32', vr(q_), f2u(1e-5), vr(q_))
        op('v_rsq_f32', vr(q_), vr(q_))
    op('s_lshl_b32', sr(sT0), sr(sRU), 5)
    op('v_add_u32', vr(4), sr(sT0), vr(vL15))
    op('v_mul_u32_u24', vr(4), 192, vr(4))
    op('v_lshl_add_u32', vr(4), vr(vG), 3, vr(4))
    op('s_mul_i32', sr(sT0), sr(sCH), 96)
    op('v_add_u32', vr(15), sr(sT0), vr(4))
    for a in range(2):
        m_, q_ = ST + 4 * a, ST + 4 * a + 1
        regs = [AC[a][u] + r for u in range(3) for r in range(4)]
        for u in range(3):
            for r in range(4):
                op('v_fma_f32', vr(AC[a][u] + r), f'-{vr(m_)}', vr(CS[u] + r), vr(AC[a][u] + r))
        for x in regs: op('v_mul_f32', vr(x), vr(q_), vr(x))
        gelu_list(regs, [F + i for i in range(12)])
        for u in range(3):
            P = F + 12 + 2 * u
            op('v_cvt_pk_bf16_f32', vr(P), vr(AC[a][u]), vr(AC[a][u] + 1))
            op('v_cvt_pk_bf16_f32', vr(P + 1), vr(AC[a][u] + 2), vr(AC[a][u] + 3))
            op('ds_write_b64', vr(15), vr(P, 2), mods=f'offset:{16 * 192 * a + 32 * u}')
    g.wait(lgkm=0)
    g.barrier()
    op('v_lshlrev_b32', vr(4), 4, vr(vLANE))
    op('v_add_u32', vr(4), sr(sW3072), vr(4))
    for n in range(3):
        op('ds_read_b128', vr(F + 4 * n, 4), vr(4), mods=f'offset:{1024 * n}')
    op('s_lshl_b32', sr(sT0), sr(sRB128), 7)
    op('s_lshl_b32', sr(sT1), sr(sW), 4)
    op('s_add_u32', sr(sT0), sr(sT0), sr(sT1))
    op('s_mul_i32', sr(sT0), sr(sT0), H2A_PITCH)
    op('s_mul_i32', sr(sT1), sr(sC16), 192)
    op('s_add_u32', sr(sT0), sr(sT0), sr(sT1))
    op('s_add_u32', sr(sT0), sr(sT0), WS['H2A'])
    op('s_cmp_eq_u32', sr(sC16), 14)
    op('s_cselect_b32', sr(sT1), 4, 12)
    for n in range(3):
        op('v_mul_u32_u24', vr(5), H2A_PITCH, vr(vKL[n]))
        op('v_lshl_add_u32', vr(5), vr(vPP[n]), 4, vr(5))
        op('v_add_u32', vr(5), sr(sT0), vr(5))
        op('v_cmp_gt_u32', 'vcc', sr(sT1), vr(vPP[n]))
        op('v_mov_b32', vr(6), 0x7f000000)
        op('v_cndmask_b32', vr(5), vr(6), vr(5), 'vcc')
        op('buffer_store_dwordx4', vr(F + 4 * n, 4), vr(5), sr(S_WS, 4), 0, mods='offen sc1')
        g.tag_last_vm('h2st')
    jmp = newlab('p3j')
    op('s_branch', jmp)
    g.label(skip)
    p3_idle()
    g.label(jmp)
    mk = g.mark()
    wo_loads()
    g.wait_mark(mk)
    g.barrier()
    publish(5)
    stamp()

_p3_barriers = 1 + 8 + 1 + 1
def p3_idle():
    for i in range(1 + 8 + 1 + 1): g_raw_barrier()
def g_raw_barrier():
    g.raw("  s_barrier")

L_WO, L_O = 32768, 98304
def wo_loads(track=True):
    op('s_lshl_b32', sr(sT4), sr(sRB), 3)
    poll(sT4, 8, 4)
    g.barrier()
    for c in range(8):
        op('s_mov_b32', sr(sT2), 65536 * c)
        dma1(vB1, S_WO, sr(sT2), L_WO + 8192 * c, f'wo{c}')
        op('s_add_u32', sr(sT2), sr(sOOFF), 128 * c)
        set_m0(L_O + 8192 * c, 1024)
        op('buffer_load_dwordx4', vr(vXA), sr(S_WS, 4), sr(sT2), mods='offen sc1 lds')
        g.tag_last_vm(f'o{c}')

aXr = {0: (42, 43), 1: (47, 48), 2: (221 + 8, 221 + 9)}
aWr = {0: (44, 45), 1: (49, 50), 2: (221 + 10, 221 + 11)}
def lds_regs(addr):
    reg = addr >> 16
    return reg, addr & 0xffff

def phase4():
    g.comment("==== wo filler + P4 ====")
    A0, A1 = vBASE, vBASE + 4
    for lo, hi in ((42, aXr[2][0]), (43, aXr[2][1]), (44, aWr[2][0]), (45, aWr[2][1])):
        op('v_add_u32', vr(hi), 131072, vr(lo))
    def areg(addr):
        r, o = lds_regs(addr); return aXr[r][0], aXr[r][1], o
    def wreg(addr):
        r, o = lds_regs(addr); return aWr[r][0], aWr[r][1], o
    NCH = 22
    free = [3, 0, 1, 2]
    slotB = {}; slotA = {}
    nextB = [0]
    def loadB(slot):
        c = nextB[0]; nextB[0] += 1
        slotB[c] = slot
        op('s_mov_b32', sr(sT2), 65536 * c)
        dma1(vB1, S_W4, sr(sT2), 8192 * slot, f'w4_{c}')
    def loadA(c, slot):
        slotA[c] = slot
        op('s_add_u32', sr(sT2), sr(sH2OFF), 128 * c)
        set_m0(8192 * slot, 1024)
        op('buffer_load_dwordx4', vr(vH2), sr(S_WS, 4), sr(sT2), mods='offen sc1 lds')
        g.tag_last_vm(f'h2_{c}')
    for s_ in free: loadB(s_)
    freed = []
    def pre(c):
        if c >= 1:
            freed.extend([4 + c - 1, 12 + c - 1])
            if c <= 5:
                loadB(freed.pop(0)); loadB(freed.pop(0))
    small_gemm(A0, A1, 8, lambda c: areg(L_O + 8192 * c), lambda c: wreg(L_WO + 8192 * c),
               lambda c: f'o{c}', lambda c: f'wo{c}', pre=pre)
    g.wait(lgkm=0)
    stamp()
    op('s_lshl_b32', sr(sT4), sr(sRB128), 4)
    poll(sT4, 16, 5)
    g.barrier()
    freed.extend([11, 19])
    nA = 0
    while freed and nA < 6:
        loadA(nA, freed.pop(0)); nA += 1
    nAq = [nA]
    stamp()
    for c in range(NCH):
        g.wait_tag(f'h2_{c}'); g.wait_tag(f'w4_{c}')
        g.barrier()
        if c >= 1:
            freed.extend([slotA[c - 1], slotB[c - 1]])
        while freed and (nAq[0] < NCH or nextB[0] < NCH):
            if nAq[0] < NCH and (nAq[0] <= nextB[0] or nextB[0] >= NCH):
                loadA(nAq[0], freed.pop(0)); nAq[0] += 1
            else:
                loadB(freed.pop(0))
        steps = 1 if c == NCH - 1 else 2
        x0, x1_, xo = areg(8192 * slotA[c]); w0, w1_, wo_ = wreg(8192 * slotB[c])
        for j in range(steps):
            f = FR + 12 * j
            rd_x(f, x0 if j == 0 else x1_, xo)
            rd_w(f + 4, w0, wo_ + 4096 * j)
            rd_w(f + 8, w1_, wo_ + 4096 * j)
        for j in range(steps):
            f = FR + 12 * j
            mfma(A0, f + 4, f); mfma(A1, f + 8, f)
    stamp()
    P = FR
    for i in range(4):
        op('v_cvt_pk_bf16_f32', vr(P + i), vr(A0 + 2 * i), vr(A0 + 2 * i + 1))
    op('v_permlane16_swap_b32', vr(P), vr(P + 2))
    op('v_permlane16_swap_b32', vr(P + 1), vr(P + 3))
    tile_store_offset(15)
    op('buffer_store_dwordx4', vr(P, 4), vr(15), sr(S_OUT, 4), 0, mods='offen')
    lbl = newlab('ep')
    op('s_or_b32', sr(sT0), sr(sFI), sr(sW))
    op('s_cmp_eq_u32', sr(sT0), 0)
    op('s_cbranch_scc0', lbl)
    g.div_begin()
    op('v_lshlrev_b32', vr(12), 9, vr(vLANE))
    op('v_add_u32', vr(63), WS['FLAGS'], vr(12))
    op('s_add_u32', sr(sT0), sr(sT), 1)
    op('s_mov_b32', sr(sT1), 0)
    loop = newlab('el'); done = newlab('ed')
    g.label(loop)
    for i in range(4):
        op('buffer_load_dword', vr(4 + i), vr(63), sr(S_WS, 4), 0, mods=f'offen offset:{128 * i} sc1')
    g.force_wait('vmcnt(0)'); g.vm = []
    for i in range(4): op('v_subrev_u32', vr(4 + i), sr(sT0), vr(4 + i))
    op('v_max_u32', vr(4), vr(4), vr(5)); op('v_max_u32', vr(6), vr(6), vr(7)); op('v_max_u32', vr(4), vr(4), vr(6))
    op('v_cmp_ge_u32', 'vcc', 6, vr(4))
    op('s_cmp_eq_u64', 'vcc', 'exec')
    op('s_cbranch_scc1', done)
    op('s_sleep', 1)
    op('s_add_u32', sr(sT1), sr(sT1), 1)
    op('s_cmp_lt_u32', sr(sT1), POLL_LIMIT)
    op('s_cbranch_scc1', loop)
    g.label(done)
    op('v_mov_b32', vr(4), sr(sT))
    op('v_mov_b32', vr(5), WS['EPOCH'])
    op('s_mov_b64', 'exec', 1)
    op('buffer_store_dword', vr(4), vr(5), sr(S_WS, 4), 0, mods='offen sc1')
    g.div_end()
    g.label(lbl)

def epilogue_end():
    g.waitall()
    g.label('L_END')
    op('s_endpgm')

def build():
    prologue()
    stamp()
    p3_setup()
    phase1a()
    stamp()
    if OPT['upto'] != 'p1a':
        phase1b()
        phase2()
        attention()
        stamp()
        phase3()
        phase4()
    stamp()
    epilogue_end()
    hdr = f"; @launch grid=(256,1,1) block=(512,1,1) lds=163840\n"
    s = hdr + '.amdgcn_target "amdgcn-amd-amdhsa--gfx950"\n.text\n'
    s += f".globl {NAME}_kernel\n.p2align 8\n.type {NAME}_kernel,@function\n{NAME}_kernel:\n"
    s += g.text()
    s += f""".section .rodata,"a"
.p2align 6
.amdhsa_kernel {NAME}_kernel
  .amdhsa_next_free_vgpr 256
  .amdhsa_next_free_sgpr 100
  .amdhsa_accum_offset 256
  .amdhsa_group_segment_fixed_size 0
  .amdhsa_kernarg_size 88
  .amdhsa_user_sgpr_count 2
  .amdhsa_user_sgpr_kernarg_segment_ptr 1
  .amdhsa_system_sgpr_workgroup_id_x 1
.end_amdhsa_kernel
"""
    return s

if __name__ == "__main__":
    out = sys.argv[1] if len(sys.argv) > 1 else "k.s"
    open(out, "w").write(build())
    print("wrote", out, "instructions:", g.nins)
```
